```python
import torch

def _softmax(x, axis=-1):
    return torch.softmax(x, dim=axis)
def _gelu(x):
    return torch.nn.functional.gelu(x, approximate="tanh")
def _silu(x):
    return torch.nn.functional.silu(x)
def _sigmoid(x):
    return torch.sigmoid(x)
def _layernorm(x, axis=-1, eps=1e-5):
    m = x.mean(dim=axis, keepdim=True)
    v = x.var(dim=axis, keepdim=True, unbiased=False)
    return (x - m) / torch.sqrt(v + eps)
def _scatter_add(tgt, idx, src, axis=0):
    return tgt.clone().index_add_(axis, idx, src)
def _segment_sum(src, seg, n):
    out = torch.zeros((n,) + src.shape[1:], dtype=src.dtype)
    return out.index_add_(0, seg, src)
def _pad(x, pw):
    flat = tuple(v for pair in reversed(pw) for v in pair)
    return torch.nn.functional.pad(x, flat)

kernel_name = 'sequential_preLN__linear_attn_block__swiglu_ffn__prompt'

def setup_inputs():

    _w = (lambda a: (lambda t: t.to(torch.bfloat16) if t.is_floating_point() else t)(torch.as_tensor(a)))
    def _A_setup():
        B, S, D = 1, 2048, 640
        return {
            "x": _w((lambda *s: torch.randn(*s, dtype=torch.bfloat16) * 0.05)(B, S, D)),
            "wqkv": _w((lambda *s: torch.randn(*s, dtype=torch.bfloat16) * 0.1)(D, 3 * D)),
            "wo": _w((lambda *s: torch.randn(*s, dtype=torch.bfloat16) * 0.05)(D, D)),
        }
    _A_in = _A_setup()

    def _B_setup():
        B, S, D, F = 1, 2048, 640, 1728
        return {
            "x": _w((lambda *s: torch.randn(*s, dtype=torch.bfloat16) * 0.05)(B, S, D)),
            "w_gate": _w((lambda *s: torch.randn(*s, dtype=torch.bfloat16) * 0.05)(D, F)),
            "w_up": _w((lambda *s: torch.randn(*s, dtype=torch.bfloat16) * 0.05)(D, F)),
            "w_down": _w((lambda *s: torch.randn(*s, dtype=torch.bfloat16) * 0.05)(F, D)),
        }
    _B_in = _B_setup()

    return {
        "A_x": _A_in["x"],
        "A_wqkv": _A_in["wqkv"],
        "A_wo": _A_in["wo"],
        "B_x": _B_in["x"],
        "B_w_gate": _B_in["w_gate"],
        "B_w_up": _B_in["w_up"],
        "B_w_down": _B_in["w_down"],
    }

def reference(A_x, A_wqkv, A_wo, B_x, B_w_gate, B_w_up, B_w_down):
    def _A_ref(x, wqkv, wo):
        B, S, D = x.shape
        H = 32; Dh = D // H
        qkv = (lambda x, *d: x.permute(*d))((x @ wqkv).reshape(B, S, 3, H, Dh), 2, 0, 3, 1, 4)
        q, k, v = qkv[0], qkv[1], qkv[2]
        phi = lambda t: torch.where(t > 0, t + 1, torch.exp(t)) + 1e-6
        pq, pk = phi(q), phi(k)
        kv = torch.einsum("bhsd,bhse->bhde", pk, v)
        z = torch.einsum("bhsd->bhd", pk)
        num = torch.einsum("bhqd,bhde->bhqe", pq, kv)
        den = torch.einsum("bhqd,bhd->bhq", pq, z)[..., None] + 1e-6
        o = num / den
        return (lambda x, *d: x.permute(*d))(o, 0, 2, 1, 3).reshape(B, S, D) @ wo

    def _B_ref(x, w_gate, w_up, w_down):
        g = _silu(x @ w_gate)
        u = x @ w_up
        return (g * u) @ w_down

    x = A_x
    h = x + _A_ref(_layernorm(x, axis=-1), A_wqkv, A_wo)
    h2 = h + _B_ref(_layernorm(h, axis=-1), B_w_gate, B_w_up, B_w_down)
    return h2
```

```python
import struct
from emit import *


def f32(x):
    return struct.unpack("<I", struct.pack("<f", x))[0]


WS_PQ = 0x0
WS_H = 0x280000
WS_ACT = 0x500000
ACT_BYTES = 54 * 128 * 1024
WS_WOF = 0xC00000
WS_WGUF = 0xD00000
WS_WDF = 0x1200000
WDF_BYTES = 54 * 40 * 1024
WS_KV = 0x1500000
KV_BYTES = 32 * 420 * 4
WS_CS = 0x1510000
CS_BYTES = 108 * 32 * 4
WS_ST = WS_CS + 0x4000
ZERO_BYTES = 0x4000 + 2048 * 8
WS_TS = 0x1520000
WS_SIZE = 0x1600000
OOB = 0x7F000000

LOG2E = 1.4426950408889634
EPS6 = 1e-6
ONES_BF16 = 0x3F803F80


def srd(k, dst, lo, hi, size):
    k.salu("s_mov_b32", s(dst), lo)
    k.salu("s_mov_b32", s(dst + 1), hi)
    k.salu("s_mov_b32", s(dst + 2), size)
    k.salu("s_mov_b32", s(dst + 3), 0x20000)


def srd_off(k, dst, lo, hi, off, size):
    k.salu("s_add_u32", s(dst), lo, off)
    k.salu("s_addc_u32", s(dst + 1), hi, 0)
    k.salu("s_mov_b32", s(dst + 2), size)
    k.salu("s_mov_b32", s(dst + 3), 0x20000)


def divmagic(k, q, x, d, tmp_s, maxv):
    M = (65536 + d - 1) // d
    for t in range(maxv + 1):
        assert (t * M) >> 16 == t // d, (d, t)
    assert M < (1 << 24) and maxv * M < (1 << 32)
    k.valu("v_mul_u32_u24", q, M, x)
    k.valu("v_lshrrev_b32", q, 16, q)


def col_to_tile_slot(k, col, T, slot, t0, t1, t2):
    divmagic(k, T, col, 80, None, 639)
    k.valu("v_mul_u32_u24", t0, 80, T)
    k.valu("v_sub_u32", t0, col, t0)
    k.valu("v_mul_u32_u24", T, 5, T)
    k.valu("v_lshrrev_b32", t1, 5, t0)
    k.valu("v_lshlrev_b32", t1, 1, t1)
    k.valu("v_bfe_u32", t2, t0, 2, 1)
    k.valu("v_add_u32", t1, t1, t2)
    k.valu("v_bfe_u32", t2, t0, 3, 2)
    k.valu("v_lshlrev_b32", t2, 2, t2)
    k.valu("v_and_b32", slot, 3, t0)
    k.valu("v_add_u32", slot, slot, t2)
    k.valu("v_cmp_le_u32", "vcc", 64, t0)
    k.valu("v_cndmask_b32", t1, t1, 4, "vcc")
    k.valu("v_and_b32", t2, 15, t0)
    k.valu("v_cndmask_b32", slot, slot, t2, "vcc")
    k.valu("v_add_u32", T, T, t1)


def py_col_to_tile_slot(col):
    cb, c = divmod(col, 80)
    if c >= 64:
        return 5 * cb + 4, c - 64
    p, w = divmod(c, 32)
    return 5 * cb + 2 * p + ((w >> 2) & 1), 4 * (w >> 3) + (w & 3)


def bf16_round(k, dst, src, tmp=None):
    k.valu("v_cvt_pk_bf16_f32", dst, src, src)
    k.valu("v_lshlrev_b32", dst, 16, dst)


def xsum_g(k, x, t):
    k.valu("v_mov_b32", t, x)
    k.valu("v_permlane32_swap_b32", x, t)
    k.valu("v_add_f32", x, x, t)
    k.valu("v_mov_b32", t, x)
    k.valu("v_permlane16_swap_b32", x, t)
    k.valu("v_add_f32", x, x, t)


def ln_stats(k, sm, sq, mean_out, rstd_out, t0, sC):
    k.valu("v_mul_f32", sm, sC, sm)
    k.valu("v_mul_f32", sq, sC, sq)
    k.valu("v_fma_f32", sq, "-" + sm, sm, sq)
    k.valu("v_max_f32", sq, 0, sq)
    bf16_round(k, mean_out, sm)
    bf16_round(k, t0, sq)
    k.valu("v_add_f32", t0, f32(1e-5), t0)
    bf16_round(k, t0, t0)
    k.valu("v_sqrt_f32", t0, t0)
    bf16_round(k, t0, t0)
    k.valu("v_rcp_f32", rstd_out, t0)


def header(k, nwg):
    k.salu("s_cmp_ge_u32", "s2", nwg)
    k.branch("s_cbranch_scc1", "L_end_" + k.name)


def descriptor(name, nvgpr, nagpr, nsgpr=102):
    acc = (nvgpr + 3) // 4 * 4
    tot = acc + nagpr if nagpr else nvgpr
    return """.p2align 6
.amdhsa_kernel %s
  .amdhsa_next_free_vgpr %d
  .amdhsa_next_free_sgpr %d
  .amdhsa_accum_offset %d
  .amdhsa_group_segment_fixed_size 0
  .amdhsa_kernarg_size 80
  .amdhsa_user_sgpr_count 2
  .amdhsa_user_sgpr_kernarg_segment_ptr 1
  .amdhsa_system_sgpr_workgroup_id_x 1
.end_amdhsa_kernel
""" % (name, tot, nsgpr, acc)
```

```python
import re


def v(n, c=1):
    return ("v%d" % n) if c == 1 else "v[%d:%d]" % (n, n + c - 1)


def a(n, c=1):
    return ("a%d" % n) if c == 1 else "a[%d:%d]" % (n, n + c - 1)


def s(n, c=1):
    return ("s%d" % n) if c == 1 else "s[%d:%d]" % (n, n + c - 1)


_REG = re.compile(r"^-?(?:abs\()?([vas])(?:(\d+)|\[(\d+):(\d+)\])\)?$")


def regs_of(op):
    if not isinstance(op, str):
        return []
    op = op.strip()
    if op in ("vcc", "exec", "m0", "scc"):
        return [op]
    if op in ("vcc_lo", "vcc_hi"):
        return ["vcc"]
    if op in ("exec_lo", "exec_hi"):
        return ["exec"]
    m = _REG.match(op)
    if not m:
        return []
    k = m.group(1)
    if m.group(2) is not None:
        return [k + m.group(2)]
    return [k + str(i) for i in range(int(m.group(3)), int(m.group(4)) + 1)]


INLINE_F = {"0.5", "-0.5", "1.0", "-1.0", "2.0", "-2.0", "4.0", "-4.0"}


def is_literal(op):
    if isinstance(op, int):
        return not (-16 <= op <= 64)
    if isinstance(op, float):
        return True
    if isinstance(op, str):
        if regs_of(op) or op in INLINE_F or op in ("off",):
            return False
        try:
            x = int(op, 0)
            return not (-16 <= x <= 64)
        except ValueError:
            return True
    return False


def fmt(op):
    if isinstance(op, int):
        return str(op) if -16 <= op <= 64 else ("0x%x" % (op & 0xFFFFFFFF))
    return str(op)


TRANS = ("v_exp_f32", "v_log_f32", "v_rcp_f32", "v_rsq_f32", "v_sqrt_f32", "v_sin_f32", "v_cos_f32")
VOP3_ONLY = (
    "v_fma_f32", "v_mad_u32_u24", "v_mul_lo_u32", "v_mul_hi_u32", "v_add3_u32", "v_lshl_add_u32", "v_add_lshl_u32",
    "v_and_or_b32", "v_bfe_u32", "v_lshl_or_b32", "v_perm_b32", "v_cvt_pk_bf16_f32", "v_med3_f32", "v_max3_f32",
    "v_pk_mul_f32", "v_pk_fma_f32", "v_pk_add_f32", "v_accvgpr_read_b32", "v_accvgpr_write_b32", "v_dot2_f32_bf16",
    "v_or3_b32", "v_xad_u32", "v_mbcnt_lo_u32_b32", "v_mbcnt_hi_u32_b32", "v_readlane_b32", "v_writelane_b32",
    "v_bfi_b32", "v_min3_f32", "v_mad_i32_i24", "v_pk_mov_b32",
)


class Ins:
    __slots__ = ("text", "size", "kind", "rd", "wr", "meta", "widen")

    def __init__(self, text, size, kind, rd=(), wr=(), meta=None, widen=None):
        self.text, self.size, self.kind = text, size, kind
        self.rd, self.wr = set(rd), set(wr)
        self.meta = meta or {}
        self.widen = widen


class K:
    def __init__(self, name):
        self.name = name
        self.ins = []
        self.vm = []
        self.lg = []

    def raw(self, text, size=4, kind="other", rd=(), wr=(), meta=None):
        self.ins.append(Ins(text, size, kind, rd, wr, meta))

    def label(self, name):
        self.ins.append(Ins(name + ":", 0, "label"))

    def comment(self, t):
        self.ins.append(Ins("; " + t, 0, "comment"))

    def valu(self, op, dst, *srcs, mods="", rmw=False, extra_rd=(), extra_wr=()):
        rd = []
        for x in srcs:
            rd += regs_of(x)
        wr = regs_of(dst)
        if rmw or op in ("v_fmac_f32", "v_dot2c_f32_bf16"):
            rd += wr
        rd += list(extra_rd)
        wr = wr + list(extra_wr)
        lit = any(is_literal(x) for x in srcs)
        e64 = op in VOP3_ONLY or mods != "" or any(isinstance(x, str) and (x.startswith("-v") or x.startswith("-s") or x.startswith("abs") or x.startswith("-a")) for x in srcs)
        if len(srcs) >= 2 and not e64 and not op.startswith("v_cmp") and op != "v_cndmask_b32":
            r1 = regs_of(srcs[1])
            if not r1 or r1[0][0] != "v" or r1[0] in ("vcc",):
                e64 = True
        if op.startswith("v_cmp"):
            if dst != "vcc":
                e64 = True
            r1 = regs_of(srcs[1])
            if not r1 or r1[0][0] != "v":
                e64 = True
        if op == "v_cndmask_b32":
            if srcs[2] != "vcc":
                e64 = True
            r1 = regs_of(srcs[1])
            if not r1 or r1[0][0] != "v":
                e64 = True
        if op in ("v_fmaak_f32", "v_fmamk_f32"):
            size = 8
        elif e64:
            assert not lit, "literal in VOP3: %s %s" % (op, srcs)
            size = 8
        else:
            size = 8 if lit else 4
        kind = "valu"
        if op in TRANS:
            kind = "trans"
        elif op.startswith("v_dot"):
            kind = "dot"
        elif op.startswith("v_permlane"):
            kind = "permlane"
            rd += wr + regs_of(srcs[0])
            wr = wr + regs_of(srcs[0])
        elif op in ("v_readfirstlane_b32", "v_readlane_b32"):
            kind = "readlane"
        body = ", ".join([fmt(dst)] + [fmt(x) for x in srcs])
        text = "%s %s%s" % (op, body, (" " + mods) if mods else "")
        widen = None
        if size == 4 and kind in ("valu", "trans") and op not in ("v_readfirstlane_b32",):
            widen = "%s_e64 %s" % (op, body)
        self.ins.append(Ins(text, size, kind, rd, wr, {"op": op}, widen))

    def mfma(self, shape, d, A, B, C):
        op = "v_mfma_f32_%s_bf16" % shape
        p = 4 if shape == "16x16x32" else 8
        rd = regs_of(A) + regs_of(B) + regs_of(C)
        self.ins.append(Ins("%s %s, %s, %s, %s" % (op, d, A, B, fmt(C)), 8, "mfma", rd, regs_of(d),
                            {"pass": p, "ab": set(regs_of(A) + regs_of(B)), "c": regs_of(C), "d": regs_of(d)}))

    def salu(self, op, dst, *srcs):
        rd = []
        for x in srcs:
            rd += regs_of(x)
        wr = regs_of(dst) if dst is not None else []
        lit = any(is_literal(x) for x in srcs)
        if op.startswith("s_cmp"):
            allops = [dst] + list(srcs)
            rd = []
            for x in allops:
                rd += regs_of(x)
            wr = ["scc"]
            lit = any(is_literal(x) for x in allops)
            text = "%s %s" % (op, ", ".join(fmt(x) for x in allops))
        else:
            text = "%s %s" % (op, ", ".join([fmt(dst)] + [fmt(x) for x in srcs]))
        if op in ("s_movk_i32", "s_addk_i32", "s_mulk_i32"):
            lit = False
        self.ins.append(Ins(text, 8 if lit else 4, "salu", rd, wr))

    def sload(self, n, dst, base, off):
        op = {1: "s_load_dword", 2: "s_load_dwordx2", 4: "s_load_dwordx4", 8: "s_load_dwordx8", 16: "s_load_dwordx16"}[n]
        self.ins.append(Ins("%s %s, %s, 0x%x" % (op, dst, base, off), 8, "smem", regs_of(base), regs_of(dst)))

    def nop(self, n=0):
        self.ins.append(Ins("s_nop %d" % n, 4, "nop", meta={"n": n + 1}))

    def barrier(self):
        self.raw("s_barrier", 4, "barrier")

    def branch(self, op, target):
        self.raw("%s %s" % (op, target), 4, "branch")

    def ds_read(self, op, dst, addr, offset=0, tag=None):
        assert 0 <= offset <= 65535, offset
        self.ins.append(Ins("%s %s, %s%s" % (op, dst, addr, (" offset:%d" % offset) if offset else ""), 8, "ds",
                            regs_of(addr), regs_of(dst), {"load": True}))
        self.lg.append(tag)

    def ds_write(self, op, addr, data, offset=0, tag=None):
        assert 0 <= offset <= 65535, offset
        self.ins.append(Ins("%s %s, %s%s" % (op, addr, data, (" offset:%d" % offset) if offset else ""), 8, "ds",
                            regs_of(addr) + regs_of(data), []))
        self.lg.append(tag)

    def _mub(self, voff, srd, soff, offset, flags):
        assert 0 <= offset <= 4095, offset
        return "%s, %s, %s offen%s%s" % (voff, srd, fmt(soff), (" offset:%d" % offset) if offset else "", (" " + flags) if flags else "")

    def bload(self, op, dst, voff, srd, soff=0, offset=0, flags="", tag=None):
        self.ins.append(Ins("%s %s, %s" % (op, dst, self._mub(voff, srd, soff, offset, flags)), 8, "vmem",
                            regs_of(voff) + regs_of(srd) + regs_of(soff), regs_of(dst), {"load": True}))
        self.vm.append(tag)

    def dma(self, voff, srd, soff=0, offset=0, flags="", tag=None):
        fl = (flags + " lds").strip()
        self.ins.append(Ins("buffer_load_dwordx4 %s" % self._mub(voff, srd, soff, offset, fl), 8, "vmem",
                            regs_of(voff) + regs_of(srd) + regs_of(soff) + ["m0"], [], {"dma": True}))
        self.vm.append(tag)

    def bstore(self, op, data, voff, srd, soff=0, offset=0, flags="", tag=None, ret=False):
        wide = op.endswith("x4") or op.endswith("x3")
        self.ins.append(Ins("%s %s, %s" % (op, data, self._mub(voff, srd, soff, offset, flags)), 8, "vmem",
                            regs_of(data) + regs_of(voff) + regs_of(srd) + regs_of(soff), regs_of(data) if ret else [],
                            {"widestore": set(regs_of(data)) if wide else None, "load": ret}))
        self.vm.append(tag)

    def wait(self, vm=None, lg=None):
        parts = []
        if vm is not None:
            vm = min(vm, 63)
            parts.append("vmcnt(%d)" % vm)
            if len(self.vm) > vm:
                self.vm = self.vm[len(self.vm) - vm:] if vm else []
        if lg is not None:
            lg = min(lg, 15)
            parts.append("lgkmcnt(%d)" % lg)
            if len(self.lg) > lg:
                self.lg = self.lg[len(self.lg) - lg:] if lg else []
        self.raw("s_waitcnt " + " ".join(parts), 4, "wait")

    def _need(self, lst, pred):
        last = -1
        for i, t in enumerate(lst):
            if pred(t):
                last = i
        return None if last < 0 else len(lst) - 1 - last

    def wait_tag(self, vm=None, lg=None):
        def mk(x):
            return x if callable(x) else (lambda t: t == x)
        nv = self._need(self.vm, mk(vm)) if vm is not None else None
        nl = self._need(self.lg, mk(lg)) if lg is not None else None
        if nv is None and nl is None:
            return
        self.wait(nv, nl)

    def hazards(self):
        out = []
        pos = 0
        lastw = {}
        mfma_c = []
        wstores = []

        def need(ins):
            req = 0
            k = ins.kind
            isvalu = k in ("valu", "trans", "dot", "permlane", "readlane")
            for r in ins.rd | ins.wr:
                if r not in lastw:
                    continue
                p, w = lastw[r]
                isrd = r in ins.rd
                d = 0
                if w.kind == "mfma":
                    ps = w.meta["pass"]
                    if k == "mfma":
                        if r in ins.meta["ab"]:
                            d = max(d, 8 if ps == 4 else 12)
                        if r in ins.meta["c"]:
                            if ins.meta["c"] == w.meta["d"] and ins.meta["pass"] == ps:
                                pass
                            else:
                                d = max(d, 6 if ps == 4 else 10)
                        if (not isrd) and ins.meta["d"] != w.meta["d"]:
                            d = max(d, 6 if ps == 4 else 10)
                    elif isvalu or k in ("ds", "vmem"):
                        d = max(d, 8 if ps == 4 else 12)
                elif w.kind in ("valu", "trans", "dot", "permlane", "readlane"):
                    if r[0] in "va" and r not in ("vcc",):
                        if k == "mfma" and isrd:
                            d = max(d, 2)
                        if w.kind == "trans" and isvalu and k != "trans" and isrd:
                            d = max(d, 1)
                        if w.kind == "trans" and k == "trans" and isrd:
                            d = max(d, 1)
                        if k == "readlane" and isrd:
                            d = max(d, 1)
                        if k == "permlane":
                            d = max(d, 2)
                        if w.kind == "dot":
                            same = k == "dot" and ins.meta.get("op") == w.meta.get("op") and r in ins.wr
                            if not same:
                                d = max(d, 3)
                    else:
                        if isvalu and isrd:
                            d = max(d, 2 if k != "readlane" else 4)
                        if k == "vmem" and isrd:
                            d = max(d, 5)
                        if k in ("salu", "branch", "smem") and isrd:
                            d = max(d, 2)
                elif w.kind == "salu":
                    if r == "m0" and ins.meta.get("dma"):
                        d = max(d, 1)
                if d:
                    req = max(req, p + d + 1)
            if isvalu:
                for p, regs, ps in mfma_c:
                    if ins.wr & regs:
                        req = max(req, p + (3 if ps == 4 else 7) + 1)
            for p, regs in wstores:
                if ins.wr & regs:
                    req = max(req, p + (2 if isvalu else 1) + 1)
            return req

        for ins in self.ins:
            if ins.kind in ("label", "comment"):
                out.append(ins)
                continue
            req = need(ins)
            if req > pos:
                n = req - pos
                while n > 0:
                    m = min(n, 16)
                    out.append(Ins("s_nop %d" % (m - 1), 4, "nop", meta={"n": m}))
                    pos += m
                    n -= m
            out.append(ins)
            for r in ins.wr:
                lastw[r] = (pos, ins)
            if ins.kind == "mfma" and ins.meta["c"]:
                mfma_c.append((pos, set(ins.meta["c"]), ins.meta["pass"]))
                mfma_c = mfma_c[-8:]
            if ins.meta.get("widestore"):
                wstores.append((pos, ins.meta["widestore"]))
                wstores = wstores[-4:]
            pos += ins.meta["n"] if ins.kind == "nop" else 1
        self.ins = out

    def align8(self, min_run=3):
        out = []
        off = 0
        n = len(self.ins)
        i = 0
        last4 = None
        while i < n:
            ins = self.ins[i]
            if ins.size == 8 and off % 8 == 4:
                run = 0
                j = i
                while j < n and self.ins[j].size in (0, 8):
                    run += 1 if self.ins[j].size == 8 else 0
                    j += 1
                if run >= 1 and last4 is not None and out[last4].widen:
                    out[last4].text = out[last4].widen
                    out[last4].size = 8
                    out[last4].widen = None
                    off += 4
                elif run >= min_run:
                    out.append(Ins("s_nop 0", 4, "nop", meta={"n": 1}))
                    off += 4
            out.append(ins)
            if ins.size == 4:
                last4 = len(out) - 1
            elif ins.size == 8:
                last4 = None
            off += ins.size
            i += 1
        self.ins = out
        return off

    def text(self):
        lines = []
        for ins in self.ins:
            if ins.kind == "label":
                lines.append(ins.text)
            else:
                lines.append("    " + ins.text)
        return "\n".join(lines) + "\n"

    def size(self):
        return sum(i.size for i in self.ins)
```

```python
from common import *

SLOT = 31744
BOFF = 16384
NSLOT = 5
SCR = NSLOT * SLOT
K1_LDS = 163840
KVP = 168


def gen_k1(cfg):
    PRE = cfg.get("k1_pre", 5)
    k = K("k1_kernel")
    S_X, S_W, S_E1, S_E2, S_WS, S_DBG, S_CS, S_CODE = 4, 8, 12, 16, 20, 24, 28, 32
    sP = 36
    sWave, sRb, sCg, sA, sB, sT0, sT1, sWm, sWn = 48, 49, 50, 51, 52, 53, 54, 55, 56
    sLA, sLB = 57, 58
    sEM = 60
    sEO = 70
    sZ, sKVo, sC640, sL2E, sJw, sCb64, sWs_, sJ, sOld = 80, 81, 82, 83, 84, 85, 86, 87, 88
    sExec = 90
    sFlagOff = 92
    vLane, vG, vS = 1, 2, 3
    vDA = 4
    vDB = 8
    vE1, vE2 = 11, 12
    vA01, vA23, vB_ = 13, 16, 19
    vT = 22
    vSum, vSq = 40, 42
    vOld, vZero = 44, 48
    vOnes = 52
    vFlag = 45
    vPre = 56
    ACC = 64
    CS = 128
    XF = 144
    WF = 176
    NV = 208

    def acc(ap, b):
        return ACC + (ap * 4 + b) * 4

    header(k, 256)
    k.sload(4, s(36, 4), "s[0:1]", 0)
    k.sload(2, s(40, 2), "s[0:1]", 16)
    k.sload(4, s(44, 4), "s[0:1]", 64)
    k.raw("s_getpc_b64 s[42:43]", 4, "salu", wr=["s42", "s43"])
    k.label("L_pc_k1")
    k.valu("v_and_b32", v(vLane), 63, "v0")
    k.valu("v_lshrrev_b32", v(vT), 6, "v0")
    k.valu("v_readfirstlane_b32", s(sWave), v(vT))
    k.valu("v_lshrrev_b32", v(vG), 4, v(vLane))
    k.valu("v_and_b32", v(vS), 15, v(vLane))
    k.salu("s_and_b32", s(sT0), "s2", 7)
    k.salu("s_lshr_b32", s(sT1), "s2", 3)
    k.salu("s_lshr_b32", s(sRb), s(sT0), 1)
    k.salu("s_lshl_b32", s(sRb), s(sRb), 2)
    k.salu("s_lshr_b32", s(sA), s(sT1), 3)
    k.salu("s_add_u32", s(sRb), s(sRb), s(sA))
    k.salu("s_and_b32", s(sCg), s(sT0), 1)
    k.salu("s_lshl_b32", s(sCg), s(sCg), 3)
    k.salu("s_and_b32", s(sA), s(sT1), 7)
    k.salu("s_add_u32", s(sCg), s(sCg), s(sA))
    k.salu("s_lshr_b32", s(sWm), s(sWave), 1)
    k.salu("s_and_b32", s(sWn), s(sWave), 1)
    k.salu("s_sub_u32", s(S_CODE), "s42", "(L_pc_k1-k1_kernel)")
    k.salu("s_subb_u32", s(S_CODE + 1), "s43", 0)
    k.salu("s_mov_b32", s(S_CODE + 2), "(L_code_end-k1_kernel)")
    k.salu("s_mov_b32", s(S_CODE + 3), 0x20000)
    k.salu("s_lshl_b32", s(sA), s(sT1), 2)
    k.salu("s_add_u32", s(sA), s(sA), s(sWave))
    k.salu("s_and_b32", s(sA), s(sA), 15)
    k.salu("s_lshl_b32", s(sA), s(sA), 10)
    k.valu("v_lshlrev_b32", v(vE2), 4, v(vLane))
    k.bload("buffer_load_dwordx4", v(vPre, 4), v(vE2), s(S_CODE, 4), s(sA), tag="pre")

    k.valu("v_lshrrev_b32", v(vT), 3, v(vLane))
    k.valu("v_mul_u32_u24", v(vT), 1280, v(vT))
    k.valu("v_and_b32", v(vT + 1), 7, v(vLane))
    k.valu("v_xor_b32", v(vT + 1), v(vT + 1), v(vG))
    k.valu("v_xor_b32", v(vT + 2), 4, v(vT + 1))
    k.valu("v_lshl_add_u32", v(vT + 3), v(vT + 1), 4, v(vT))
    k.valu("v_lshl_add_u32", v(vT + 4), v(vT + 2), 4, v(vT))
    k.salu("s_mul_i32", s(sT0), s(sWave), 4 * 8 * 1280)
    for q in range(4):
        k.salu("s_add_u32", s(sA), s(sT0), q * 8 * 1280)
        k.valu("v_add_u32", v(vDA + q), s(sA), v(vT + 3 + (q & 1)))
    for q in range(4):
        dst = vDB + q if q < 3 else vE1
        k.salu("s_lshl_b32", s(sA), s(sWave), 6)
        k.salu("s_add_u32", s(sA), s(sA), 256 * q)
        k.valu("v_add_u32", v(vT), s(sA), v(vLane))
        divmagic(k, v(vT + 1), v(vT), 15, None, 1023)
        k.valu("v_mul_u32_u24", v(vT + 2), 15, v(vT + 1))
        k.valu("v_sub_u32", v(vT + 2), v(vT), v(vT + 2))
        k.valu("v_and_b32", v(vT + 3), 32, v(vT + 1))
        k.valu("v_bfe_u32", v(vT + 4), v(vT + 1), 3, 2)
        k.valu("v_lshl_add_u32", v(vT + 3), v(vT + 4), 3, v(vT + 3))
        k.valu("v_and_b32", v(vT + 4), 1, v(vT + 1))
        k.valu("v_lshl_add_u32", v(vT + 3), v(vT + 4), 2, v(vT + 3))
        k.valu("v_bfe_u32", v(vT + 4), v(vT + 1), 1, 2)
        k.valu("v_add_u32", v(vT + 3), v(vT + 3), v(vT + 4))
        k.valu("v_mul_u32_u24", v(vT + 3), 3840, v(vT + 3))
        divmagic(k, v(vT + 4), v(vT + 2), 5, None, 15)
        k.valu("v_mul_u32_u24", v(vT + 5), 5, v(vT + 4))
        k.valu("v_sub_u32", v(vT + 5), v(vT + 2), v(vT + 5))
        k.valu("v_lshl_add_u32", v(vT + 3), v(vT + 5), 4, v(vT + 3))
        k.valu("v_add_u32", v(vT + 4), 1, v(vT + 4))
        k.valu("v_cmp_eq_u32", "vcc", 3, v(vT + 4))
        k.valu("v_cndmask_b32", v(vT + 4), v(vT + 4), 0, "vcc")
        k.valu("v_mul_u32_u24", v(vT + 4), 1280, v(vT + 4))
        k.valu("v_add_u32", v(dst), v(vT + 3), v(vT + 4))
    k.salu("s_mul_i32", s(sJw), "s2", 6554)
    k.salu("s_lshr_b32", s(sJw), s(sJw), 16)
    k.salu("s_mul_i32", s(sT0), s(sJw), 10)
    k.salu("s_sub_u32", s(sCb64), "s2", s(sT0))
    k.salu("s_mul_i32", s(sWs_), s(sJw), 13108)
    k.salu("s_lshr_b32", s(sWs_), s(sWs_), 16)
    k.salu("s_mul_i32", s(sT0), s(sWs_), 5)
    k.salu("s_sub_u32", s(sJ), s(sJw), s(sT0))
    k.salu("s_lshl_b32", s(sT0), s(sJ), 3)
    k.valu("v_lshrrev_b32", v(vT), 3, v(vLane))
    k.valu("v_add_u32", v(vT), s(sT0), v(vT))
    divmagic(k, v(vT + 1), v(vT), 5, None, 63)
    k.valu("v_mul_u32_u24", v(vT + 2), 15, v(vT + 1))
    k.valu("v_add_u32", v(vT), v(vT), v(vT + 2))
    k.valu("v_mul_u32_u24", v(vT), 1280, v(vT))
    k.valu("v_and_b32", v(vT + 1), 7, v(vLane))
    k.valu("v_lshl_add_u32", v(vT), v(vT + 1), 4, v(vT))
    k.salu("s_cmp_eq_u32", s(sWave), 3)
    k.salu("s_cselect_b64", s(sExec, 2), -1, 0)
    k.valu("v_cndmask_b32", v(vE2), v(vE1), v(vE2), s(sExec, 2))
    k.valu("v_cndmask_b32", v(vE1), v(vE1), v(vT), s(sExec, 2))

    k.wait(lg=0)
    srd(k, S_X, "s36", "s37", 2621440)
    srd(k, S_W, "s38", "s39", 2457600)
    srd(k, S_DBG, "s44", "s45", 256)
    srd(k, S_WS, "s46", "s47", WS_SIZE)
    srd_off(k, S_CS, "s46", "s47", WS_CS, ZERO_BYTES)
    k.salu("s_cmp_eq_u32", s(sWave), 3)
    k.salu("s_cselect_b32", s(S_E1), "s40", "s38")
    k.salu("s_cselect_b32", s(S_E1 + 1), "s41", "s39")
    k.salu("s_cselect_b32", s(S_E1 + 2), 819200, s(S_W + 2))
    k.salu("s_mov_b32", s(S_E1 + 3), 0x20000)
    k.salu("s_cselect_b32", s(S_E2), s(S_CODE), "s38")
    k.salu("s_cselect_b32", s(S_E2 + 1), s(S_CODE + 1), "s39")
    k.salu("s_cselect_b32", s(S_E2 + 2), s(S_CODE + 2), s(S_W + 2))
    k.salu("s_mov_b32", s(S_E2 + 3), 0x20000)
    k.valu("v_mov_b32", v(vOld), 1)
    k.salu("s_lshl_b32", s(sT0), s(sCg), 2)
    k.valu("v_mov_b32", v(vT), OOB)
    k.valu("v_cmp_eq_u32", "vcc", 0, v(vLane))
    k.valu("v_cndmask_b32", v(vFlag), v(vT), 0, "vcc")
    k.bstore("buffer_atomic_add", v(vOld), v(vFlag), s(S_DBG, 4), s(sT0), flags="sc0", tag="atom", ret=True)
    k.salu("s_add_u32", s(sFlagOff), s(sT0), 64)
    k.salu("s_mul_i32", s(sA), s(sRb), 128 * 1280)
    k.salu("s_mul_i32", s(sB), s(sCg), 80)
    k.salu("s_lshl_b32", s(sLA), s(sWave), 12)
    k.salu("s_lshl_b32", s(sLB), s(sWave), 10)
    k.salu("s_add_u32", s(sLB), s(sLB), BOFF)
    k.salu("s_mul_i32", s(sT0), s(sWs_), 160 * 1280)
    k.salu("s_lshl_b32", s(sT1), s(sCb64), 7)
    k.salu("s_add_u32", s(sT0), s(sT0), s(sT1))
    k.salu("s_cmp_ge_u32", "s2", 200)
    k.salu("s_cselect_b32", s(sT0), OOB, s(sT0))
    k.salu("s_lshr_b32", s(sT1), "s2", 3)
    k.salu("s_mul_i32", s(sT1), s(sT1), 6144)
    k.salu("s_add_u32", s(sT1), s(sT1), "(k2_kernel-k1_kernel)")
    k.salu("s_cmp_eq_u32", s(sWave), 3)
    for t in range(10):
        k.salu("s_add_u32", s(sZ), s(sB), t * 64 * 3840)
        if t < 4:
            k.salu("s_add_u32", s(sKVo), s(sT0), t * 5 * 1280)
        else:
            k.salu("s_add_u32", s(sKVo), s(sT1), (t - 4) * 1024)
        k.salu("s_add_u32", s(sEM + t), s(sLB), (t % NSLOT) * SLOT + 12 * 1024)
        k.salu("s_cmp_eq_u32", s(sWave), 3)
        k.salu("s_cselect_b32", s(sEO + t), s(sKVo), s(sZ))
        k.salu("s_cselect_b32", s(sEM + t), (SCR + 1024 * t) if t < 4 else 0x30000, s(sEM + t))

    def issue_stage(t):
        ops = []
        slot = (t % NSLOT) * SLOT
        for q in range(4):
            def f(q=q):
                k.salu("s_add_u32", "m0", s(sLA), slot + q * 1024)
                k.dma(v(vDA + q), s(S_X, 4), s(sA), tag=("st", t))
            ops.append(f)
        for q in range(3):
            def f(q=q):
                k.salu("s_add_u32", "m0", s(sLB), slot + q * 4096)
                k.dma(v(vDB + q), s(S_W, 4), s(sB), tag=("st", t))
            ops.append(f)

        def f():
            k.salu("s_mov_b32", "m0", s(sEM + t))
            if t < 4:
                k.dma(v(vE1), s(S_E1, 4), s(sEO + t), tag=("st", t))
            else:
                k.dma(v(vE2), s(S_E2, 4), s(sEO + t), tag=("st", t))
            k.salu("s_add_u32", s(sA), s(sA), 128)
            k.salu("s_add_u32", s(sB), s(sB), 64 * 3840)
        ops.append(f)
        return ops

    for t in range(PRE):
        for f in issue_stage(t):
            f()

    vA01u1, vA23u1 = 22, 25
    vT2 = 28
    k.valu("v_lshrrev_b32", v(vT2), 1, v(vS))
    k.valu("v_xor_b32", v(vT2), v(vT2), v(vG))
    k.valu("v_lshlrev_b32", v(vT2), 4, v(vT2))
    k.valu("v_lshl_add_u32", v(vT2), v(vS), 7, v(vT2))
    k.salu("s_lshl_b32", s(sT0), s(sWm), 13)
    k.salu("s_lshl_b32", s(sT1), s(sWn), 12)
    k.salu("s_add_u32", s(sZ), s(sT0), s(sT1))
    k.salu("s_xor_b32", s(sT1), s(sT1), 4096)
    k.salu("s_add_u32", s(sKVo), s(sT0), s(sT1))
    k.valu("v_xor_b32", v(vT2 + 1), 64, v(vT2))
    for gi in range(3):
        k.salu("s_add_u32", s(sT0), s(sZ), gi * 2 * SLOT)
        k.valu("v_add_u32", v(vA01 + gi), s(sT0), v(vT2))
        k.valu("v_add_u32", v(vA01u1 + gi), s(sT0), v(vT2 + 1))
        k.salu("s_add_u32", s(sT0), s(sKVo), gi * 2 * SLOT)
        k.valu("v_add_u32", v(vA23 + gi), s(sT0), v(vT2))
        k.valu("v_add_u32", v(vA23u1 + gi), s(sT0), v(vT2 + 1))
    k.valu("v_bfe_u32", v(vT2), v(vLane), 2, 2)
    k.valu("v_lshlrev_b32", v(vT2), 1, v(vT2))
    k.valu("v_lshl_add_u32", v(vT2), v(vG), 3, v(vT2))
    k.valu("v_mul_u32_u24", v(vT2), 240, v(vT2))
    k.valu("v_and_b32", v(vT2 + 1), 3, v(vLane))
    k.valu("v_lshl_add_u32", v(vT2), v(vT2 + 1), 3, v(vT2))
    k.salu("s_lshl_b32", s(sT0), s(sWn), 7)
    k.salu("s_add_u32", s(sT0), s(sT0), BOFF)
    for gi in range(3):
        k.salu("s_add_u32", s(sT1), s(sT0), gi * 2 * SLOT)
        k.valu("v_add_u32", v(vB_ + gi), s(sT1), v(vT2))
    for i in range(4):
        k.valu("v_mov_b32", v(vOnes + i), ONES_BF16)
        k.valu("v_mov_b32", v(vZero + i), 0)
    for i in range(2):
        k.valu("v_mov_b32", v(vSum + i), 0)
        k.valu("v_mov_b32", v(vSq + i), 0)
    k.salu("s_mov_b32", s(sC640), f32(1.0 / 640))
    k.salu("s_mov_b32", s(sL2E), f32(LOG2E))

    def frag_reads(kap):
        t, u2 = kap >> 1, kap & 1
        sl = t % NSLOT
        gi, so = sl >> 1, (sl & 1) * SLOT
        buf = kap & 1
        ops = []
        for b in range(4):
            for u in range(2):
                def f(b=b, u=u):
                    k.ds_read("ds_read_b64_tr_b16", v(WF + buf * 16 + b * 4 + u * 2, 2), v(vB_ + gi),
                              so + 240 * (32 * u2 + u) + 32 * b, tag=("fr", kap))
                ops.append(f)
        xo = []
        for ap in range(4):
            def f(ap=ap):
                base = ([vA01, vA01u1] if ap < 2 else [vA23, vA23u1])[u2] + gi
                k.ds_read("ds_read_b128", v(XF + buf * 16 + ap * 4, 4), v(base), so + (ap & 1) * 2048, tag=("fr", kap))
            xo.append(f)
        res = []
        for i in range(4):
            res += [xo[i], ops[2 * i], ops[2 * i + 1]]
        return res

    k.wait_tag(vm=("st", 0))
    k.barrier()
    for f in frag_reads(0):
        f()
    k.valu("v_readfirstlane_b32", s(sOld), v(vOld))
    k.salu("s_mul_i32", s(sKVo), s(sCg), 3360)
    k.salu("s_add_u32", s(sKVo), s(sKVo), WS_KV)
    k.salu("s_cmp_eq_u32", s(sOld), 0)
    k.salu("s_cselect_b32", s(sZ), s(sKVo), OOB)
    k.valu("v_lshlrev_b32", v(vT2), 4, v(vLane))
    k.valu("v_mov_b32", v(vT2 + 2), OOB)
    k.valu("v_cmp_gt_u32", "vcc", 18, v(vLane))
    k.valu("v_cndmask_b32", v(vT2 + 1), v(vT2 + 2), v(vT2), "vcc")
    for i in range(3):
        k.bstore("buffer_store_dwordx4", v(vZero, 4), v(vT2), s(S_WS, 4), s(sZ), offset=1024 * i, flags="sc0 sc1", tag="zero")
    k.bstore("buffer_store_dwordx4", v(vZero, 4), v(vT2 + 1), s(S_WS, 4), s(sZ), offset=3072, flags="sc0 sc1", tag="zero")
    k.valu("v_lshlrev_b32", v(vT2 + 3), 4, "v0")
    k.salu("s_lshl_b32", s(sT0), "s2", 12)
    k.bstore("buffer_store_dwordx4", v(vZero, 4), v(vT2 + 3), s(S_CS, 4), s(sT0), tag="zero2")
    k.salu("s_cmp_eq_u32", s(sOld), 0)
    k.salu("s_cselect_b32", s(sZ), s(sFlagOff), OOB)

    next_stage = PRE
    for kap in range(20):
        t, u2 = kap >> 1, kap & 1
        buf = kap & 1
        fill = []
        k.wait_tag(lg=("fr", kap))
        if u2 == 1 and t + 1 < 10:
            k.wait_tag(vm=("st", t + 1))
            k.barrier()
            if t + 1 == 5:
                k.valu("v_mov_b32", v(vT2 + 4), 1)
                k.bstore("buffer_store_dword", v(vT2 + 4), v(vFlag), s(S_DBG, 4), s(sZ), flags="sc0 sc1", tag="flag")
        if kap == 15:
            k.bload("buffer_load_dword", v(vOld), v(vFlag), s(S_DBG, 4), s(sFlagOff), flags="sc0 sc1", tag="poll")
        if kap + 1 < 20:
            fill += frag_reads(kap + 1)
        nread = len(fill)
        for ap in range(2):
            for d in range(4):
                x = v(XF + buf * 16 + ap * 4 + d)
                fill.append(lambda x=x, ap=ap: k.valu("v_dot2c_f32_bf16", v(vSq + ap), x, x))
                fill.append(lambda x=x, ap=ap: k.valu("v_dot2c_f32_bf16", v(vSum + ap), x, v(vOnes)))
        loads = []
        if u2 == 1 and next_stage < 10 and next_stage <= t + NSLOT:
            loads = issue_stage(next_stage)
            next_stage += 1
        if u2 == 0 and next_stage < 10 and next_stage <= t - 1 + NSLOT and next_stage < NSLOT:
            loads = issue_stage(next_stage)
            next_stage += 1
        mf = []
        for b in range(4):
            for ap in range(4):
                mf.append((v(acc(ap, b), 4), v(WF + buf * 16 + b * 4, 4), v(XF + buf * 16 + ap * 4, 4)))
            mf.append((v(CS + b * 4, 4), v(WF + buf * 16 + b * 4, 4), v(vOnes, 4)))
        fi = 0
        li = 0
        for i, (d, A, B) in enumerate(mf):
            k.mfma("16x16x32", d, A, B, 0 if kap == 0 else d)
            for _ in range(2):
                if fi < len(fill):
                    fill[fi]()
                    fi += 1
            if i >= 6 and (i % 2 == 0) and li < len(loads):
                loads[li]()
                li += 1
        while fi < len(fill):
            fill[fi]()
            fi += 1
        while li < len(loads):
            loads[li]()
            li += 1

    vP = XF
    vM = [vP + 0, vP + 2, vP + 4, vP + 6]
    vR = [vP + 8, vP + 10, vP + 12, vP + 14]
    vE = vP + 16
    vW = vP + 20
    k.wait_tag(vm="poll")
    k.valu("v_readfirstlane_b32", s(sOld), v(vOld))
    vWo = vW + 20
    vWa = vW + 24
    k.valu("v_lshrrev_b32", v(vWa), 2, v(vLane))
    k.valu("v_and_b32", v(vWa + 1), 3, v(vWa))
    k.valu("v_lshl_add_u32", v(vWa), v(vG), 3, v(vWa + 1))
    k.valu("v_lshlrev_b32", v(vWa), 7, v(vWa))
    k.valu("v_and_b32", v(vWa + 1), 3, v(vLane))
    k.valu("v_lshl_add_u32", v(vWa), v(vWa + 1), 3, v(vWa))
    k.salu("s_lshl_b32", s(sT0), s(sWave), 5)
    k.salu("s_add_u32", s(sT0), s(sT0), SCR)
    k.valu("v_add_u32", v(vWa), s(sT0), v(vWa))
    k.ds_read("ds_read_b64_tr_b16", v(vWo, 2), v(vWa), 0, tag="wo")
    k.ds_read("ds_read_b64_tr_b16", v(vWo + 2, 2), v(vWa), 512, tag="wo")
    for ap in range(2):
        xsum_g(k, v(vSum + ap), v(vW))
        xsum_g(k, v(vSq + ap), v(vW + 1))
    for ap in range(2):
        ln_stats(k, v(vSum + ap), v(vSq + ap), v(vM[ap]), v(vR[ap]), v(vW), s(sC640))
        k.valu("v_mul_f32", v(vM[ap]), v(vM[ap]), v(vR[ap]))
        k.valu("v_sub_f32", v(vM[ap]), 0, v(vM[ap]))
    k.salu("s_lshl_b32", s(sT0), s(sCb64), 6)
    k.salu("s_lshl_b32", s(sT1), s(sWave), 4)
    k.salu("s_add_u32", s(sT0), s(sT0), s(sT1))
    k.valu("v_add_u32", v(vWa + 1), s(sT0), v(vS))
    col_to_tile_slot(k, v(vWa + 1), v(vWa + 2), v(vWa + 3), v(vW), v(vW + 1), v(vW + 2))
    k.valu("v_lshlrev_b32", v(vWa + 2), 10, v(vWa + 2))
    k.valu("v_lshl_add_u32", v(vWa + 3), v(vG), 4, v(vWa + 3))
    k.valu("v_lshl_add_u32", v(vWa + 2), v(vWa + 3), 4, v(vWa + 2))
    k.salu("s_mul_i32", s(sT0), s(sJw), 40 * 1024)
    k.salu("s_add_u32", s(sT0), s(sT0), WS_WOF)
    k.salu("s_cmp_ge_u32", "s2", 200)
    k.salu("s_cselect_b32", s(sT0), OOB, s(sT0))
    k.wait_tag(lg="wo")
    k.bstore("buffer_store_dwordx4", v(vWo, 4), v(vWa + 2), s(S_WS, 4), s(sT0), tag="wost")
    STAT = SCR + 4096
    k.salu("s_lshl_b32", s(sT0), s(sWm), 9)
    k.salu("s_lshl_b32", s(sT1), s(sWn), 8)
    k.salu("s_add_u32", s(sA), s(sT0), s(sT1))
    k.salu("s_xor_b32", s(sT1), s(sT1), 256)
    k.salu("s_add_u32", s(sB), s(sT0), s(sT1))
    k.salu("s_add_u32", s(sA), s(sA), STAT)
    k.salu("s_add_u32", s(sB), s(sB), STAT)
    k.valu("v_lshlrev_b32", v(vW), 3, v(vS))
    k.valu("v_add_u32", v(vW + 1), s(sB), v(vW))
    k.valu("v_add_u32", v(vW), s(sA), v(vW))
    for ap in range(2):
        k.valu("v_mov_b32", v(vW + 2 + 2 * ap), v(vM[ap]))
        k.valu("v_mov_b32", v(vW + 3 + 2 * ap), v(vR[ap]))
        k.ds_write("ds_write_b64", v(vW), v(vW + 2 + 2 * ap, 2), ap * 128, tag="stw")
    k.wait(lg=0)
    k.barrier()
    k.ds_read("ds_read_b64", v(vW + 6, 2), v(vW + 1), 0, tag="str")
    k.ds_read("ds_read_b64", v(vW + 8, 2), v(vW + 1), 128, tag="str")
    k.valu("v_mov_b32", v(vE), f32(EPS6))
    k.valu("v_mov_b32", v(vE + 2), f32(-EPS6 * LOG2E))
    k.valu("v_mov_b32", v(vE + 1), s(sL2E))
    k.valu("v_mov_b32", v(vE + 3), s(sL2E))
    vL = vE + 4
    k.valu("v_mov_b32", v(vL), s(sL2E))
    k.valu("v_mov_b32", v(vL + 1), s(sL2E))
    vW = vP + 24
    vWw = vP + 20
    k.wait_tag(lg="str")
    k.valu("v_mov_b32", v(vM[2]), v(vWw + 6))
    k.valu("v_mov_b32", v(vR[2]), v(vWw + 7))
    k.valu("v_mov_b32", v(vM[3]), v(vWw + 8))
    k.valu("v_mov_b32", v(vR[3]), v(vWw + 9))
    vW = vP + 32
    BC = " op_sel_hi:[0,1,0]"

    def pk(op, d, x, y, z, sel):
        hi = ",".join("0" if b else "1" for b in sel)
        k.valu(op, d, x, y, z, mods="op_sel_hi:[%s]" % hi)

    def elem_tile(ap, b, mode, w):
        A = acc(ap, b)
        C = CS + b * 4
        c0, t0, u0, o0 = w, w + 4, w + 8, w + 12
        for h in range(2):
            if mode == "id":
                k.valu("v_pk_mul_f32", v(c0 + 2 * h, 2), v(vM[ap], 2), v(C + 2 * h, 2), mods="op_sel_hi:[0,1]")
            else:
                pk("v_pk_fma_f32", v(c0 + 2 * h, 2), v(vM[ap], 2), v(C + 2 * h, 2), v(vE, 2), (1, 0, 1))
        for h in range(2):
            pk("v_pk_fma_f32", v(t0 + 2 * h, 2), v(A + 2 * h, 2), v(vR[ap], 2), v(c0 + 2 * h, 2), (0, 1, 0))
        if mode != "id":
            for h in range(2):
                pk("v_pk_fma_f32", v(u0 + 2 * h, 2), v(t0 + 2 * h, 2), v(vL, 2), v(vE + 2, 2), (0, 0, 1))
            for r in range(4):
                k.valu("v_exp_f32", v(u0 + r), v(u0 + r), mods="clamp")
            for r in range(4):
                k.valu("v_max_f32", v(c0 + r), v(vE), v(t0 + r))
            for h in range(2):
                k.valu("v_pk_add_f32", v(c0 + 2 * h, 2), v(c0 + 2 * h, 2), v(u0 + 2 * h, 2))
            if mode == "mix":
                for r in range(4):
                    k.valu("v_sub_f32", v(t0 + r), v(t0 + r), v(vE))
                    k.valu("v_cndmask_b32", v(c0 + r), v(t0 + r), v(c0 + r), s(sExec, 2))
            src = c0
        else:
            src = t0
        k.valu("v_cvt_pk_bf16_f32", v(o0), v(src), v(src + 1))
        k.valu("v_cvt_pk_bf16_f32", v(o0 + 1), v(src + 2), v(src + 3))
        return o0

    vKA = 4
    k.valu("v_mul_u32_u24", v(vKA + 2), KVP, v(vS))
    k.valu("v_lshl_add_u32", v(vKA + 2), v(vG), 3, v(vKA + 2))
    k.salu("s_mul_i32", s(sT0), s(sWm), 64 * KVP)
    k.salu("s_mul_i32", s(sT1), s(sWn), 32 * KVP)
    k.salu("s_add_u32", s(sA), s(sT0), s(sT1))
    k.salu("s_sub_u32", s(sT1), 32 * KVP, s(sT1))
    k.salu("s_add_u32", s(sB), s(sT0), s(sT1))
    k.valu("v_add_u32", v(vKA), s(sA), v(vKA + 2))
    k.valu("v_add_u32", v(vKA + 1), s(sB), v(vKA + 2))
    k.valu("v_cmp_gt_u32", s(sExec, 2), 2, v(vG))
    k.salu("s_cmp_eq_u32", s(sWn), 1)
    k.branch("s_cbranch_scc1", "L_k1_epi1")
    saved_vm, saved_lg = list(k.vm), list(k.lg)
    i = 0
    for ap in range(4):
        for b, mode in enumerate(["phi", "phi", "mix", "id"]):
            o = elem_tile(ap, b, mode, vW + 16 * (i & 1))
            k.ds_write("ds_write_b64", v(vKA + (ap >> 1)), v(o, 2), (ap & 1) * 16 * KVP + 32 * b, tag="kvw")
            i += 1
    k.branch("s_branch", "L_k1_epi2")
    k.label("L_k1_epi1")
    vQ = 8
    k.salu("s_mul_i32", s(sT0), s(sCg), 40)
    for tq in range(3):
        k.valu("v_lshlrev_b32", v(vW), 2, v(vG))
        k.valu("v_add_u32", v(vW), s(sT0), v(vW))
        if tq:
            k.valu("v_add_u32", v(vW), 16 * tq, v(vW))
        k.valu("v_lshrrev_b32", v(vW + 1), 5, v(vW))
        k.valu("v_lshlrev_b32", v(vW + 1), 17, v(vW + 1))
        k.valu("v_bfe_u32", v(vW + 2), v(vW), 3, 2)
        k.valu("v_lshl_add_u32", v(vW + 2), v(vW + 2), 4, v(vS))
        k.valu("v_lshl_add_u32", v(vW + 1), v(vW + 2), 4, v(vW + 1))
        k.valu("v_bfe_u32", v(vW + 2), v(vW), 2, 1)
        k.valu("v_lshl_add_u32", v(vQ + tq), v(vW + 2), 3, v(vW + 1))
    k.valu("v_mov_b32", v(vW), OOB)
    k.valu("v_cndmask_b32", v(vQ + 2), v(vW), v(vQ + 2), s(sExec, 2))
    k.salu("s_lshl_b32", s(sT0), s(sRb), 3)
    k.salu("s_lshl_b32", s(sT1), s(sWm), 2)
    k.salu("s_add_u32", s(sT0), s(sT0), s(sT1))
    k.salu("s_lshl_b32", s(sT0), s(sT0), 10)
    k.salu("s_add_u32", s(sA), s(sT0), 2048)
    k.salu("s_mov_b32", s(sB), s(sT0))
    k.valu("v_mov_b32", v(vQ + 4), 0x3F80)
    k.valu("v_mov_b32", v(vQ + 5), 0)
    k.valu("v_lshlrev_b32", v(vW), 3, v(vG))
    k.valu("v_sub_u32", v(vKA + 2), v(vKA), v(vW))
    k.valu("v_sub_u32", v(vKA + 3), v(vKA + 1), v(vW))
    i = 0
    for ap in range(4):
        k.ds_write("ds_write_b64", v(vKA + 2 + (ap >> 1)), v(vQ + 4, 2), (ap & 1) * 16 * KVP + 160, tag="kvw")
        for b, mode in enumerate(["id", "phi", "phi", "phi"]):
            o = elem_tile(ap, b, mode, vW + 16 * (i & 1))
            if b == 0:
                k.ds_write("ds_write_b64", v(vKA + (ap >> 1)), v(o, 2), (ap & 1) * 16 * KVP + 128, tag="kvw")
            else:
                k.bstore("buffer_store_dwordx2", v(o, 2), v(vQ + b - 1), s(S_WS, 4), s(sA if ap < 2 else sB), offset=(ap & 1) * 1024, tag="pq")
            i += 1
    k.label("L_k1_epi2")
    k.vm, k.lg = [None] * 40, [None] * 15
    def enc(qs):
        return qs[0] | qs[1] << 8 | qs[2] << 16 | qs[3] << 24
    A1h0, A1h1, A2 = enc([10, 11, 12, 13]), enc([15, 16, 17, 18]), enc([14, 19, 20, 20])
    B1h0, B1h1, B2 = enc([0, 1, 2, 3]), enc([5, 6, 7, 8]), enc([4, 9, 4, 9])
    sAq, sBq0, sBq1 = sEM, sEM + 1, sEM + 2
    k.salu("s_mov_b32", s(sAq), A2)
    k.salu("s_mov_b32", s(sBq0), B2)
    k.salu("s_mov_b32", s(sBq1), B2)
    k.salu("s_cmp_eq_u32", s(sWave), 0)
    k.salu("s_cselect_b32", s(sAq), A1h0, s(sAq))
    k.salu("s_cselect_b32", s(sBq0), B1h0, s(sBq0))
    k.salu("s_cmp_eq_u32", s(sWave), 1)
    k.salu("s_cselect_b32", s(sAq), A1h1, s(sAq))
    k.salu("s_cselect_b32", s(sBq0), B1h1, s(sBq0))
    k.salu("s_cmp_eq_u32", s(sWave), 2)
    k.salu("s_cselect_b32", s(sBq0), B1h0, s(sBq0))
    k.salu("s_cselect_b32", s(sBq1), B1h1, s(sBq1))
    vK = ACC
    k.valu("v_and_b32", v(vK), 1, v(vG))
    k.valu("v_bfe_u32", v(vK + 1), v(vLane), 2, 2)
    k.valu("v_lshl_add_u32", v(vK), v(vK), 2, v(vK + 1))
    k.valu("v_lshrrev_b32", v(vK + 1), 1, v(vG))
    k.valu("v_lshl_add_u32", v(vK), v(vK), 2, v(vK + 1))
    k.valu("v_mul_u32_u24", v(vK), KVP, v(vK))
    k.valu("v_and_b32", v(vK + 1), 3, v(vLane))
    k.valu("v_lshlrev_b32", v(vK + 1), 3, v(vK + 1))
    vAa, vB0a, vB1a = vK + 2, vK + 3, vK + 4
    for dst, tb in ((vAa, sAq), (vB0a, sBq0), (vB1a, sBq1)):
        k.valu("v_bfe_u32", v(dst), s(tb), v(vK + 1), 8)
        k.valu("v_lshl_add_u32", v(dst), v(dst), 3, v(vK))
    vO0, vO1 = vK + 5, vK + 6
    k.valu("v_lshlrev_b32", v(vK + 7), 3, v(vG))
    k.valu("v_bfe_u32", v(vK + 7), s(sAq), v(vK + 7), 8)
    k.valu("v_subrev_u32", v(vK + 7), 10, v(vK + 7))
    k.valu("v_lshrrev_b32", v(vK + 8), 2, v(vS))
    k.valu("v_lshlrev_b32", v(vK + 8), 3, v(vK + 8))
    for dst, tb, second in ((vO0, sBq0, 0), (vO1, sBq1, 1)):
        k.valu("v_bfe_u32", v(vK + 9), s(tb), v(vK + 8), 8)
        k.valu("v_cmp_le_u32", "vcc", 5, v(vK + 9))
        k.valu("v_cndmask_b32", v(vK + 10), 0, 1, "vcc")
        k.valu("v_mul_u32_u24", v(vK + 11), 5, v(vK + 10))
        k.valu("v_sub_u32", v(vK + 9), v(vK + 9), v(vK + 11))
        k.valu("v_sub_u32", v(vK + 11), v(vK + 7), v(vK + 11))
        k.valu("v_cmp_eq_u32", "vcc", 10, v(vK + 7))
        k.valu("v_cndmask_b32", v(vK + 11), v(vK + 11), 5, "vcc")
        k.valu("v_cmp_eq_u32", s(sExec, 2), 5, v(vK + 7))
        k.valu("v_cmp_eq_u32", "vcc", 0, v(vK + 10))
        k.salu("s_and_b64", s(sExec, 2), s(sExec, 2), "vcc")
        k.valu("v_cndmask_b32", v(vK + 11), v(vK + 11), 63, s(sExec, 2))
        k.valu("v_mul_u32_u24", v(dst), 21, v(vK + 10))
        k.valu("v_lshl_add_u32", v(dst), v(vK + 11), 2, v(dst))
        k.valu("v_mul_u32_u24", v(dst), 20, v(dst))
        k.valu("v_lshl_add_u32", v(dst), v(vK + 9), 2, v(dst))
        k.valu("v_and_b32", v(vK + 12), 3, v(vS))
        k.valu("v_add_lshl_u32", v(dst), v(dst), v(vK + 12), 2)
        k.valu("v_mov_b32", v(vK + 12), OOB)
        k.valu("v_cmp_lt_u32", "vcc", 5, v(vK + 11))
        k.valu("v_cndmask_b32", v(dst), v(dst), v(vK + 12), "vcc")
        k.salu("s_cmp_eq_u32", s(tb), B2)
        k.salu("s_cselect_b32", s(sT0), 8, 16)
        k.valu("v_cmp_le_u32", "vcc", s(sT0), v(vS))
        k.valu("v_cndmask_b32", v(dst), v(dst), v(vK + 12), "vcc")
        k.salu("s_cmp_eq_u32", s(sAq), A2)
        k.salu("s_cselect_b32", s(sT0), 3, 4)
        k.valu("v_cmp_le_u32", "vcc", s(sT0), v(vG))
        k.valu("v_cndmask_b32", v(dst), v(dst), v(vK + 12), "vcc")
        if second:
            k.salu("s_cmp_eq_u32", s(sWave), 3)
            k.salu("s_cselect_b32", s(sT1), OOB, s(sKVo))
    k.wait(lg=0)
    k.barrier()
    FA, FB0, FB1, D0, D1 = vK + 16, vK + 32, vK + 48, vK + 64, vK + 68
    for ks in range(4):
        for u in range(2):
            off = (32 * ks + 2 * u) * KVP
            k.ds_read("ds_read_b64_tr_b16", v(FA + ks * 4 + 2 * u, 2), v(vAa), off, tag=("kv", ks))
            k.ds_read("ds_read_b64_tr_b16", v(FB0 + ks * 4 + 2 * u, 2), v(vB0a), off, tag=("kv", ks))
            k.ds_read("ds_read_b64_tr_b16", v(FB1 + ks * 4 + 2 * u, 2), v(vB1a), off, tag=("kv", ks))
        if ks >= 1:
            kk = ks - 1
            k.wait_tag(lg=("kv", kk))
            k.mfma("16x16x32", v(D0, 4), v(FA + kk * 4, 4), v(FB0 + kk * 4, 4), 0 if kk == 0 else v(D0, 4))
            k.mfma("16x16x32", v(D1, 4), v(FA + kk * 4, 4), v(FB1 + kk * 4, 4), 0 if kk == 0 else v(D1, 4))
    k.wait_tag(lg=("kv", 3))
    k.mfma("16x16x32", v(D0, 4), v(FA + 12, 4), v(FB0 + 12, 4), v(D0, 4))
    k.mfma("16x16x32", v(D1, 4), v(FA + 12, 4), v(FB1 + 12, 4), v(D1, 4))
    k.label("L_k1_poll")
    k.salu("s_cmp_lg_u32", s(sOld), 0)
    k.branch("s_cbranch_scc1", "L_k1_go")
    k.raw("s_sleep 2", 4, "other")
    k.bload("buffer_load_dword", v(vOld), v(vFlag), s(S_DBG, 4), s(sFlagOff), flags="sc0 sc1", tag="poll")
    k.wait(vm=0)
    k.valu("v_readfirstlane_b32", s(sOld), v(vOld))
    k.nop(3)
    k.branch("s_branch", "L_k1_poll")
    k.label("L_k1_go")
    k.nop(7)
    for r in range(4):
        k.bstore("buffer_atomic_add_f32", v(D0 + r), v(vO0), s(S_WS, 4), s(sKVo), offset=80 * r, tag="kvat")
        k.bstore("buffer_atomic_add_f32", v(D1 + r), v(vO1), s(S_WS, 4), s(sT1), offset=80 * r, tag="kvat")
    k.label("L_end_k1_kernel")
    k.raw("s_endpgm", 4, "other")
    return k, NV, 0, K1_LDS
```

```python
from common import *

KVR = 14336
ZR = 4 * KVR
EX = 65536
RT = 131072
K2_LDS = RT + 4 * 5120


def wg_map_2(k, sRb2, sCb, t0, t1):
    k.salu("s_and_b32", s(t0), "s2", 7)
    k.salu("s_lshr_b32", s(t1), "s2", 3)
    k.salu("s_lshr_b32", s(sRb2), s(t0), 1)
    k.salu("s_lshl_b32", s(sRb2), s(sRb2), 3)
    k.salu("s_and_b32", s(sCb), s(t0), 1)
    k.salu("s_lshl_b32", s(sCb), s(sCb), 2)
    k.salu("s_lshr_b32", s(t0), s(t1), 2)
    k.salu("s_add_u32", s(sRb2), s(sRb2), s(t0))
    k.salu("s_and_b32", s(t0), s(t1), 3)
    k.salu("s_add_u32", s(sCb), s(sCb), s(t0))


def h_chunk_addr(k, vA, vB, vLane, vG, vS, sRb2, sCb, sWave, t0, sT0, sT1):
    k.salu("s_lshl_b32", s(sT0), s(sRb2), 1)
    k.salu("s_lshr_b32", s(sT1), s(sWave), 1)
    k.salu("s_add_u32", s(sT0), s(sT0), s(sT1))
    k.salu("s_mul_i32", s(sT0), s(sT0), 40960)
    k.salu("s_mul_i32", s(sT1), s(sCb), 5120)
    k.salu("s_add_u32", s(sT0), s(sT0), s(sT1))
    k.salu("s_and_b32", s(sT1), s(sWave), 1)
    k.salu("s_lshl_b32", s(sT1), s(sT1), 8)
    k.salu("s_add_u32", s(sT0), s(sT0), s(sT1))
    k.salu("s_add_u32", s(sT0), s(sT0), WS_H)
    k.valu("v_lshlrev_b32", v(t0), 4, v(vS))
    k.valu("v_add_u32", v(t0), s(sT0), v(t0))
    k.valu("v_lshrrev_b32", v(vA), 1, v(vG))
    k.valu("v_lshl_add_u32", v(vA), v(vA), 10, v(t0))
    k.valu("v_and_b32", v(vB), 1, v(vG))
    k.valu("v_lshl_add_u32", v(vA), v(vB), 9, v(vA))
    k.valu("v_lshl_add_u32", v(t0), v(vB), 3, v(t0))
    k.valu("v_lshrrev_b32", v(vB), 1, v(vG))
    k.valu("v_lshl_add_u32", v(vB), v(vB), 9, v(t0))
    k.valu("v_add_u32", v(vB), 4096, v(vB))


def reduce_exchange(k, accs, own, vLane16, sWave, vT, sT0, stage):
    for ap in range(1, 4):
        k.salu("s_add_u32", s(sT0), s(sWave), ap)
        k.salu("s_and_b32", s(sT0), s(sT0), 3)
        k.salu("s_mul_i32", s(sT0), s(sT0), 15360)
        k.salu("s_add_u32", s(sT0), s(sT0), EX + (ap - 1) * 5120)
        k.valu("v_add_u32", v(vT + ap), s(sT0), v(vLane16))
        for T in range(5):
            k.ds_write("ds_write_b128", v(vT + ap), accs[ap][T], T * 1024, tag="exw")
    k.salu("s_mul_i32", s(sT0), s(sWave), 15360)
    k.salu("s_add_u32", s(sT0), s(sT0), EX)
    k.valu("v_add_u32", v(vT), s(sT0), v(vLane16))
    k.wait(lg=0)
    k.barrier()
    for i in range(15):
        k.ds_read("ds_read_b128", v(stage + 4 * i, 4), v(vT), i * 1024, tag=("exr", i))
    for src in range(3):
        for T in range(5):
            i = src * 5 + T
            k.wait_tag(lg=("exr", i))
            for h in range(2):
                k.valu("v_pk_add_f32", v(own[T] + 2 * h, 2), v(own[T] + 2 * h, 2), v(stage + 4 * i + 2 * h, 2))


def residual_pack(k, own, res, outp, tmp):
    order = []
    for p in range(2):
        order += [(own[2 * p], res + 4 * p), (own[2 * p] + 2, res + 4 * p + 1), (own[2 * p + 1], res + 4 * p + 2), (own[2 * p + 1] + 2, res + 4 * p + 3)]
    order += [(own[4], res + 8), (own[4] + 2, res + 9)]
    for i, (o, r) in enumerate(order):
        t = tmp + 4 * (i & 1)
        k.valu("v_cvt_pk_bf16_f32", v(t), v(o), v(o + 1))
        k.valu("v_lshlrev_b32", v(o), 16, v(t))
        k.valu("v_and_b32", v(o + 1), 0xFFFF0000, v(t))
        k.valu("v_lshlrev_b32", v(t + 2), 16, v(r))
        k.valu("v_and_b32", v(t + 3), 0xFFFF0000, v(r))
        k.valu("v_pk_add_f32", v(o, 2), v(o, 2), v(t + 2, 2))
        k.valu("v_cvt_pk_bf16_f32", v(outp + i), v(o), v(o + 1))
    return order


def gen_k2(cfg):
    k = K("k2_kernel")
    S_X, S_WS, S_KV, S_GU = 4, 8, 12, 16
    sWave, sRb2, sCb, sT0, sT1, sT2, sU, sMat, sCb64, sKb, sLds, sEps = 48, 49, 50, 51, 52, 53, 54, 55, 56, 57, 58, 59
    sM = 60
    vLane, vG, vS, vL16 = 1, 2, 3, 4
    vPq = 5
    vW4 = 9
    vT = 10
    KVF, D1, D2, OF = 16, 96, 144, 192
    OF3, OWN, XR = 16, 36, 96
    A_PQ, A_WO, A_ACC = 0, 80, 180

    def of(ap):
        return OF + 20 * ap if ap < 3 else OF3

    header(k, 256)
    k.sload(2, s(36, 2), "s[0:1]", 0)
    k.sload(4, s(40, 4), "s[0:1]", 32)
    k.sload(2, s(46, 2), "s[0:1]", 72)
    k.valu("v_and_b32", v(vLane), 63, "v0")
    k.valu("v_lshrrev_b32", v(vT), 6, "v0")
    k.valu("v_readfirstlane_b32", s(sWave), v(vT))
    k.valu("v_lshrrev_b32", v(vG), 4, v(vLane))
    k.valu("v_and_b32", v(vS), 15, v(vLane))
    k.valu("v_lshlrev_b32", v(vL16), 4, v(vLane))
    wg_map_2(k, sRb2, sCb, sT0, sT1)
    for ap in range(4):
        k.salu("s_add_u32", s(sT0), s(sWave), ap)
        k.salu("s_and_b32", s(sT0), s(sT0), 3)
        k.salu("s_lshl_b32", s(sT0), s(sT0), 10)
        k.valu("v_add_u32", v(vPq + ap), s(sT0), v(vL16))
    k.valu("v_add_u32", v(vW4), 4096, v(vL16))
    k.salu("s_mul_i32", s(sLds), s(sWave), KVR)
    k.wait(lg=0)
    srd(k, S_X, "s36", "s37", 2621440)
    srd(k, S_WS, "s46", "s47", WS_SIZE)
    srd_off(k, S_KV, "s46", "s47", WS_KV, KV_BYTES)
    k.salu("s_mul_i32", s(sT0), s(sWave), 13440)
    for i in range(14):
        if i % 4 == 0:
            k.salu("s_add_u32", "m0", s(sLds), (i // 4) * 4096)
            k.salu("s_add_u32", s(sT1), s(sT0), (i // 4) * 4096)
        k.dma(v(vL16), s(S_KV, 4), s(sT1), offset=(i % 4) * 1024, tag="kv")
    k.salu("s_mul_i32", s(sT0), s(sWave), 5 * 131072)
    k.salu("s_lshl_b32", s(sT1), s(sRb2), 12)
    k.salu("s_add_u32", s(sT0), s(sT0), s(sT1))
    for ap in range(4):
        for j in range(5):
            k.salu("s_add_u32", s(sT1), s(sT0), j * 131072 + WS_PQ)
            k.bload("buffer_load_dwordx4", a(A_PQ + (ap * 5 + j) * 4, 4), v(vPq + ap), s(S_WS, 4), s(sT1), tag=("pq", ap))
    k.salu("s_mul_i32", s(sT0), s(sWave), 5 * 40960)
    k.salu("s_mul_i32", s(sT1), s(sCb), 5120)
    k.salu("s_add_u32", s(sT0), s(sT0), s(sT1))
    for j in range(5):
        k.salu("s_add_u32", s(sT1), s(sT0), j * 40960 + WS_WOF)
        for T in range(5):
            if T < 4:
                k.bload("buffer_load_dwordx4", a(A_WO + (j * 5 + T) * 4, 4), v(vL16), s(S_WS, 4), s(sT1), offset=T * 1024, tag="wo")
            else:
                k.bload("buffer_load_dwordx4", a(A_WO + (j * 5 + T) * 4, 4), v(vW4), s(S_WS, 4), s(sT1), tag="wo")
    k.salu("s_lshl_b32", s(sU), "s2", 2)
    k.salu("s_add_u32", s(sU), s(sU), s(sWave))
    k.salu("s_cmp_ge_u32", s(sU), 432)
    k.salu("s_cselect_b32", s(sMat), 1, 0)
    k.salu("s_cselect_b32", s(S_GU), "s42", "s40")
    k.salu("s_cselect_b32", s(S_GU + 1), "s43", "s41")
    k.salu("s_mov_b32", s(S_GU + 2), 2211840)
    k.salu("s_mov_b32", s(S_GU + 3), 0x20000)
    k.salu("s_mul_i32", s(sT0), s(sMat), 432)
    k.salu("s_sub_u32", s(sT0), s(sU), s(sT0))
    k.salu("s_lshr_b32", s(sCb64), s(sT0), 4)
    k.salu("s_and_b32", s(sKb), s(sT0), 15)
    k.salu("s_mul_i32", s(sT0), s(sKb), 40 * 3456)
    k.salu("s_lshl_b32", s(sT1), s(sCb64), 7)
    k.salu("s_add_u32", s(sT0), s(sT0), s(sT1))
    k.salu("s_cmp_ge_u32", s(sU), 864)
    k.salu("s_cselect_b32", s(sT0), OOB, s(sT0))
    k.valu("v_lshrrev_b32", v(vT), 3, v(vLane))
    k.valu("v_mul_u32_u24", v(vT), 3456, v(vT))
    k.valu("v_and_b32", v(vT + 1), 7, v(vLane))
    k.valu("v_lshl_add_u32", v(vT), v(vT + 1), 4, v(vT))
    k.salu("s_mul_i32", s(sT2), s(sWave), 5120)
    for o in range(5):
        k.salu("s_add_u32", "m0", s(sT2), RT + o * 1024)
        k.salu("s_add_u32", s(sT1), s(sT0), o * 8 * 3456)
        k.dma(v(vT), s(S_GU, 4), s(sT1), tag="rt")

    pairs = []
    for m in range(12):
        heads = sorted(set((4 * m + r) // 6 for r in range(4)))
        js = sorted(set(j for h in heads for j in range((20 * h) // 32, (20 * h + 19) // 32 + 1)))
        pairs += [(m, j) for j in js]
    assert len(pairs) == 20
    AD = D2
    U_, HP = OF, OF + 12
    V_, HD = OF + 24, OF + 34
    W_ = OF + 44
    k.valu("v_mov_b32", v(W_ + 4), 0)
    k.valu("v_mov_b32", v(W_ + 5), 0)
    k.valu("v_mov_b32", v(W_ + 6), 0)
    k.valu("v_mov_b32", v(W_ + 7), 0)
    k.valu("v_mov_b32", v(W_ + 8), ZR)
    k.ds_write("ds_write_b128", v(W_ + 8), v(W_ + 4, 4), 0, tag="z")
    k.valu("v_and_b32", v(W_), 3, v(vS))
    k.valu("v_lshrrev_b32", v(W_ + 1), 2, v(vS))
    k.valu("v_mul_u32_u24", v(W_ + 1), 5, v(W_ + 1))
    for m in range(12):
        k.valu("v_add_u32", v(W_ + 2), 4 * m, v(W_))
        divmagic(k, v(HP + m), v(W_ + 2), 6, None, 47)
        k.valu("v_mul_u32_u24", v(W_ + 3), 6, v(HP + m))
        k.valu("v_sub_u32", v(W_ + 2), v(W_ + 2), v(W_ + 3))
        k.valu("v_cmp_eq_u32", "vcc", 5, v(W_ + 2))
        k.valu("v_add_u32", v(W_ + 2), v(W_ + 2), v(W_ + 1))
        k.valu("v_mul_u32_u24", v(W_ + 3), 21, v(HP + m))
        k.valu("v_cndmask_b32", v(W_ + 2), v(W_ + 2), 20, "vcc")
        k.valu("v_add_u32", v(W_ + 2), v(W_ + 2), v(W_ + 3))
        k.valu("v_mul_u32_u24", v(W_ + 2), 80, v(W_ + 2))
        k.valu("v_add_u32", v(U_ + m), s(sLds), v(W_ + 2))
    k.valu("v_lshlrev_b32", v(W_), 3, v(vG))
    for j in range(5):
        for b in range(2):
            i = 2 * j + b
            k.valu("v_add_u32", v(W_ + 2), 32 * j + 4 * b, v(W_))
            divmagic(k, v(HD + i), v(W_ + 2), 20, None, 159)
            k.valu("v_mul_u32_u24", v(W_ + 3), 20, v(HD + i))
            k.valu("v_sub_u32", v(W_ + 2), v(W_ + 2), v(W_ + 3))
            k.valu("v_lshlrev_b32", v(V_ + i), 2, v(W_ + 2))
    todo = [(pi, b) for pi in range(20) for b in range(2)]
    for c in range(0, 40, 4):
        grp = todo[c:c + 4]
        for n, (pi, b) in enumerate(grp):
            m, j = pairs[pi]
            k.valu("v_cmp_eq_u32", s(sM + 2 * n, 2), v(HP + m), v(HD + 2 * j + b))
            k.valu("v_add_u32", v(AD + 2 * pi + b), v(U_ + m), v(V_ + 2 * j + b))
        for n, (pi, b) in enumerate(grp):
            k.valu("v_cndmask_b32", v(AD + 2 * pi + b), v(W_ + 8), v(AD + 2 * pi + b), s(sM + 2 * n, 2))
    k.salu("s_mov_b32", s(sEps), f32(EPS6))
    k.wait_tag(vm="kv", lg="z")
    groups = [list(range(i, min(i + 3, 20))) for i in range(0, 20, 3)]

    def rd(gi):
        for n, pi in enumerate(groups[gi]):
            for b in range(2):
                k.ds_read("ds_read_b128", v(D1 + (gi & 1) * 24 + n * 8 + b * 4, 4), v(AD + 2 * pi + b), 0, tag=("kf", gi))
    rd(0)
    for gi in range(len(groups)):
        if gi + 1 < len(groups):
            rd(gi + 1)
        k.wait_tag(lg=("kf", gi))
        for n, pi in enumerate(groups[gi]):
            for q in range(4):
                src = D1 + (gi & 1) * 24 + n * 8 + q * 2
                k.valu("v_cvt_pk_bf16_f32", v(KVF + pi * 4 + q), v(src), v(src + 1))

    def M(ap):
        D = D1 if ap % 2 == 0 else D2
        ops = []
        seen = set()
        for pi, (m, j) in enumerate(pairs):
            first = m not in seen
            seen.add(m)
            ops.append(lambda pi=pi, m=m, j=j, first=first: k.mfma("16x16x32", v(D + 4 * m, 4), v(KVF + pi * 4, 4),
                                                                   a(A_PQ + (ap * 5 + j) * 4, 4), 0 if first else v(D + 4 * m, 4)))
        return ops

    def N(ap):
        D = D1 if ap % 2 == 0 else D2
        ops = []
        for h in range(8):
            b = D + 6 * h
            ops.append(lambda b=b: k.valu("v_add_f32", v(b + 5), s(sEps), v(b + 5)))
        for h in range(8):
            b = D + 6 * h
            ops.append(lambda b=b: k.valu("v_rcp_f32", v(b + 5), v(b + 5)))
        done = 0
        for h in range(8):
            b = D + 6 * h
            for i in range(5):
                ops.append(lambda b=b, i=i: k.valu("v_mul_f32", v(b + i), v(b + i), v(b + 5)))
            while 2 * done + 1 <= 5 * h + 4:
                f0, f1 = 2 * done, 2 * done + 1
                r0, r1 = D + 6 * (f0 // 5) + f0 % 5, D + 6 * (f1 // 5) + f1 % 5
                ops.append(lambda d=done, r0=r0, r1=r1: k.valu("v_cvt_pk_bf16_f32", v(of(ap) + d), v(r0), v(r1)))
                done += 1
        assert done == 20
        return ops

    def interleave(mf, fl, per):
        fi = 0
        for f in mf:
            f()
            for _ in range(per):
                if fi < len(fl):
                    fl[fi]()
                    fi += 1
        while fi < len(fl):
            fl[fi]()
            fi += 1

    k.wait_tag(vm=("pq", 0))
    interleave(M(0), [], 0)
    for ap in range(1, 4):
        k.wait_tag(vm=("pq", ap))
        interleave(M(ap), N(ap - 1), 3)
    k.salu("s_lshl_b32", s(sT0), s(sRb2), 6)
    k.salu("s_lshl_b32", s(sT1), s(sWave), 4)
    k.salu("s_add_u32", s(sT0), s(sT0), s(sT1))
    k.salu("s_mul_i32", s(sT0), s(sT0), 1280)
    k.salu("s_mul_i32", s(sT1), s(sCb), 160)
    k.salu("s_add_u32", s(sT0), s(sT0), s(sT1))
    k.valu("v_mul_u32_u24", v(vT), 1280, v(vS))
    k.valu("v_lshl_add_u32", v(vT + 1), v(vG), 3, v(vT))
    k.valu("v_lshl_add_u32", v(vT), v(vG), 4, v(vT))
    k.bload("buffer_load_dwordx4", v(XR, 4), v(vT), s(S_X, 4), s(sT0), tag="x")
    k.bload("buffer_load_dwordx4", v(XR + 4, 4), v(vT), s(S_X, 4), s(sT0), offset=64, tag="x")
    k.bload("buffer_load_dwordx2", v(XR + 8, 2), v(vT + 1), s(S_X, 4), s(sT0), offset=128, tag="x")

    def accr(ap, T):
        return v(OWN + 4 * T, 4) if ap == 0 else a(A_ACC + ((ap - 1) * 5 + T) * 4, 4)

    def G(ap):
        ops = []
        for j in range(5):
            for T in range(5):
                ops.append(lambda j=j, T=T: k.mfma("16x16x32", accr(ap, T), a(A_WO + (j * 5 + T) * 4, 4), v(of(ap) + 4 * j, 4),
                                                   0 if j == 0 else accr(ap, T)))
        return ops
    k.wait_tag(vm="wo")
    interleave(G(1) + G(2), N(3), 2)
    interleave(G(0) + G(3), [], 0)
    own = [OWN + 4 * T for T in range(5)]
    accs = {ap: [accr(ap, T) for T in range(5)] for ap in range(1, 4)}
    reduce_exchange(k, accs, own, vL16, sWave, vT, sT0, D2)
    OUTP, TMP = 112, 124
    vHA, vHB = 132, 133
    h_chunk_addr(k, vHA, vHB, vLane, vG, vS, sRb2, sCb, sWave, 134, sT0, sT1)
    k.wait_tag(vm="x")
    order = residual_pack(k, own, XR, OUTP, TMP)
    k.bstore("buffer_store_dwordx4", v(OUTP, 4), v(vHA), s(S_WS, 4), 0, tag="h")
    k.bstore("buffer_store_dwordx4", v(OUTP + 4, 4), v(vHA), s(S_WS, 4), 0, offset=2048, tag="h")
    k.bstore("buffer_store_dwordx2", v(OUTP + 8, 2), v(vHB), s(S_WS, 4), 0, tag="h")
    vSm, vSq, vOne = 136, 137, 138
    k.valu("v_mov_b32", v(vSm), 0)
    k.valu("v_mov_b32", v(vSq), 0)
    k.valu("v_mov_b32", v(vOne), ONES_BF16)
    for i in range(10):
        k.valu("v_dot2c_f32_bf16", v(vSm), v(OUTP + i), v(vOne))
        k.valu("v_dot2c_f32_bf16", v(vSq), v(OUTP + i), v(OUTP + i))
    xsum_g(k, v(vSm), v(139))
    xsum_g(k, v(vSq), v(140))
    k.valu("v_cmp_eq_u32", "vcc", 1, v(vG))
    k.valu("v_cndmask_b32", v(vSm), v(vSm), v(vSq), "vcc")
    k.valu("v_lshlrev_b32", v(139), 3, v(vS))
    k.valu("v_lshl_add_u32", v(139), v(vG), 2, v(139))
    k.valu("v_mov_b32", v(140), OOB)
    k.valu("v_cmp_gt_u32", "vcc", 2, v(vG))
    k.valu("v_cndmask_b32", v(139), v(140), v(139), "vcc")
    k.salu("s_lshl_b32", s(sT0), s(sRb2), 9)
    k.salu("s_lshl_b32", s(sT1), s(sWave), 7)
    k.salu("s_add_u32", s(sT0), s(sT0), s(sT1))
    k.salu("s_add_u32", s(sT0), s(sT0), WS_ST)
    k.bstore("buffer_atomic_add_f32", v(vSm), v(139), s(S_WS, 4), s(sT0), tag="st")

    R0 = 144
    vRa, vRs, vCs = 141, 142, 143
    k.valu("v_bfe_u32", v(vRa), v(vLane), 2, 2)
    k.valu("v_lshlrev_b32", v(vRa), 7, v(vRa))
    k.valu("v_lshl_add_u32", v(vRa), v(vG), 5, v(vRa))
    k.valu("v_and_b32", v(vRs), 1, v(vLane))
    k.valu("v_lshl_add_u32", v(vRa), v(vRs), 4, v(vRa))
    k.valu("v_bfe_u32", v(vRs), v(vLane), 1, 1)
    k.valu("v_lshl_add_u32", v(vRa), v(vRs), 3, v(vRa))
    k.salu("s_add_u32", s(sT2), s(sT2), RT)
    k.valu("v_add_u32", v(vRa), s(sT2), v(vRa))
    k.wait_tag(vm="rt")
    for o in range(5):
        for u in range(2):
            k.ds_read("ds_read_b64_tr_b16", v(R0 + 4 * o + 2 * u, 2), v(vRa), o * 1024 + u * 512, tag=("rr", o))
    k.valu("v_mul_u32_u24", v(vRs), 40960, v(vG))
    k.valu("v_lshl_add_u32", v(vRs), v(vS), 4, v(vRs))
    k.salu("s_mul_i32", s(sT0), s(sCb64), 4 * 40960)
    k.salu("s_lshl_b32", s(sT1), s(sMat), 8)
    k.salu("s_add_u32", s(sT0), s(sT0), s(sT1))
    k.salu("s_mul_i32", s(sT1), s(sKb), 5 * 512)
    k.salu("s_add_u32", s(sT0), s(sT0), s(sT1))
    k.salu("s_add_u32", s(sT0), s(sT0), WS_WGUF)
    k.salu("s_cmp_ge_u32", s(sU), 864)
    k.salu("s_cselect_b32", s(sT0), OOB, s(sT0))
    k.valu("v_mov_b32", v(vCs), 0)
    for o in range(5):
        k.wait_tag(lg=("rr", o))
        k.bstore("buffer_store_dwordx4", v(R0 + 4 * o, 4), v(vRs), s(S_WS, 4), s(sT0), offset=o * 512, tag="rs")
        for q in range(4):
            k.valu("v_dot2c_f32_bf16", v(vCs), v(R0 + 4 * o + q), v(vOne))
    k.valu("v_lshlrev_b32", v(vRa), 7, v(vG))
    k.valu("v_lshl_add_u32", v(vRa), v(vS), 2, v(vRa))
    k.salu("s_lshl_b32", s(sT0), s(sCb64), 9)
    k.salu("s_lshl_b32", s(sT1), s(sMat), 6)
    k.salu("s_add_u32", s(sT0), s(sT0), s(sT1))
    k.salu("s_add_u32", s(sT0), s(sT0), WS_CS)
    k.salu("s_cmp_ge_u32", s(sU), 864)
    k.salu("s_cselect_b32", s(sT0), OOB, s(sT0))
    k.bstore("buffer_atomic_add_f32", v(vCs), v(vRa), s(S_WS, 4), s(sT0), tag="cs")
    k.label("L_end_k2_kernel")
    k.raw("s_endpgm", 4, "other")
    return k, 256, 240, K2_LDS
```

```python
from common import *

NST = 18


def gen_k3(cfg):
    R = cfg.get("k3_ring", 8)
    PRE = cfg.get("k3_pre", 3)
    CSL = R * 16384
    RT = CSL + 1024
    LDS = RT + 4 * 3072
    k = K("k3_kernel")
    S_WS, S_WD = 4, 8
    sWave, sRb, sFb, sT0, sT1, sT2, sTz, sWA, sWB, sWC, sH, sLw, sU, sCb64, sOb, sC640 = range(48, 64)
    sAct = 64
    vLane, vHf, vS32, vL16 = 1, 2, 3, 4
    vRd = 5
    vCsA = 8
    vSt = 9
    vNm, vK1, vK2 = 10, 11, 12
    vT = 14
    vG16, vS16 = 22, 23
    ACC = 32
    CSR = 144
    EW = 176
    NV = 224
    A_H, A_W = 0, 160
    NWB = 12

    header(k, 256)
    k.sload(2, s(40, 2), "s[0:1]", 48)
    k.sload(2, s(46, 2), "s[0:1]", 72)
    k.valu("v_and_b32", v(vLane), 63, "v0")
    k.valu("v_lshrrev_b32", v(vT), 6, "v0")
    k.valu("v_readfirstlane_b32", s(sWave), v(vT))
    k.valu("v_lshrrev_b32", v(vHf), 5, v(vLane))
    k.valu("v_and_b32", v(vS32), 31, v(vLane))
    k.valu("v_lshlrev_b32", v(vL16), 4, v(vLane))
    k.valu("v_lshrrev_b32", v(vG16), 4, v(vLane))
    k.valu("v_and_b32", v(vS16), 15, v(vLane))
    k.salu("s_and_b32", s(sT0), "s2", 7)
    k.salu("s_lshr_b32", s(sT1), "s2", 3)
    k.salu("s_lshr_b32", s(sRb), s(sT0), 1)
    k.salu("s_lshl_b32", s(sRb), s(sRb), 2)
    k.salu("s_lshr_b32", s(sT2), s(sT1), 3)
    k.salu("s_add_u32", s(sRb), s(sRb), s(sT2))
    k.salu("s_and_b32", s(sFb), s(sT0), 1)
    k.salu("s_lshl_b32", s(sFb), s(sFb), 3)
    k.salu("s_and_b32", s(sT2), s(sT1), 7)
    k.salu("s_add_u32", s(sFb), s(sFb), s(sT2))
    k.salu("s_mul_i32", s(sTz), s(sFb), 7)
    k.salu("s_min_u32", s(sTz), s(sTz), 101)
    k.salu("s_add_u32", s(sT0), s(sTz), s(sWave))
    k.salu("s_mul_i32", s(sWA), s(sT0), 40960)
    k.salu("s_add_u32", s(sWA), s(sWA), WS_WGUF)
    k.salu("s_and_b32", s(sT0), s(sWave), 1)
    k.salu("s_add_u32", s(sT0), s(sT0), s(sTz))
    k.salu("s_add_u32", s(sT0), s(sT0), 4)
    k.salu("s_mul_i32", s(sWB), s(sT0), 40960)
    k.salu("s_lshr_b32", s(sT0), s(sWave), 1)
    k.salu("s_lshl_b32", s(sT0), s(sT0), 12)
    k.salu("s_add_u32", s(sWB), s(sWB), s(sT0))
    k.salu("s_add_u32", s(sWB), s(sWB), WS_WGUF)
    k.salu("s_add_u32", s(sT0), s(sTz), 6)
    k.salu("s_mul_i32", s(sWC), s(sT0), 40960)
    k.salu("s_lshl_b32", s(sLw), s(sWave), 12)
    k.salu("s_add_u32", s(sWC), s(sWC), s(sLw))
    k.salu("s_add_u32", s(sWC), s(sWC), WS_WGUF)
    k.salu("s_lshl_b32", s(sT0), s(sRb), 2)
    k.salu("s_add_u32", s(sT0), s(sT0), s(sWave))
    k.salu("s_mul_i32", s(sH), s(sT0), 40960)
    k.salu("s_add_u32", s(sH), s(sH), WS_H)
    k.wait(lg=0)
    srd(k, S_WS, "s46", "s47", WS_SIZE)
    srd(k, S_WD, "s40", "s41", 2211840)
    k.salu("s_lshl_b32", s(sT0), s(sT0), 8)
    k.salu("s_add_u32", s(sT0), s(sT0), WS_ST)
    k.valu("v_lshlrev_b32", v(vT), 3, v(vS32))
    k.bload("buffer_load_dwordx2", v(vT + 2, 2), v(vT), s(S_WS, 4), s(sT0), tag="stat")
    k.salu("s_mov_b32", "m0", CSL)
    k.salu("s_lshl_b32", s(sT0), s(sTz), 7)
    k.salu("s_add_u32", s(sT0), s(sT0), WS_CS)
    k.dma(v(vL16), s(S_WS, 4), s(sT0), tag="stat")

    def issue_stage(st):
        ops = []
        slot = (st % R) * 16384

        def head():
            k.salu("s_add_u32", "m0", s(sLw), slot)
            if st < 10:
                k.salu("s_add_u32", s(sT2), s(sWA), st * 4096)
            elif st < 15:
                k.salu("s_add_u32", s(sT2), s(sWB), (st - 10) * 8192)
            else:
                k.salu("s_add_u32", s(sT2), s(sWC), (st - 15) * 16384)
        for jl in range(4):
            def f(jl=jl):
                if jl == 0:
                    head()
                k.dma(v(vL16), s(S_WS, 4), s(sT2), offset=jl * 1024, tag=("st", st))
            ops.append(f)
        if st < 10:
            for jl in range(4):
                def f(jl=jl):
                    if jl == 0:
                        k.salu("s_add_u32", s(sT1), s(sH), st * 4096)
                    k.bload("buffer_load_dwordx4", a(A_H + (4 * st + jl) * 4, 4), v(vL16), s(S_WS, 4), s(sT1), offset=jl * 1024, tag=("st", st))
                ops.append(f)
        return ops

    for st in range(PRE):
        for f in issue_stage(st):
            f()
    for i in range(3):
        k.valu("v_add_u32", v(vRd + i), 65536 * i, v(vL16))
    k.valu("v_lshlrev_b32", v(vCsA), 4, v(vHf))
    k.valu("v_add_u32", v(vCsA), CSL, v(vCsA))
    k.salu("s_lshl_b32", s(sT0), s(sRb), 3)
    k.salu("s_lshl_b32", s(sT1), s(sWave), 1)
    k.salu("s_add_u32", s(sT0), s(sT0), s(sT1))
    k.salu("s_lshl_b32", s(sT0), s(sT0), 10)
    k.valu("v_bfe_u32", v(vSt), v(vLane), 4, 1)
    k.valu("v_lshlrev_b32", v(vSt), 10, v(vSt))
    k.valu("v_lshl_add_u32", v(vSt), v(vHf), 8, v(vSt))
    k.valu("v_lshl_add_u32", v(vSt), v(vS16), 4, v(vSt))
    k.valu("v_add_u32", v(vSt), s(sT0), v(vSt))
    for t in range(7):
        k.salu("s_add_u32", s(sT0), s(sTz), t)
        k.salu("s_lshr_b32", s(sT1), s(sT0), 1)
        k.salu("s_lshl_b32", s(sT1), s(sT1), 17)
        k.salu("s_and_b32", s(sT0), s(sT0), 1)
        k.salu("s_lshl_b32", s(sT0), s(sT0), 9)
        k.salu("s_add_u32", s(sT0), s(sT0), s(sT1))
        k.salu("s_add_u32", s(sAct + t), s(sT0), WS_ACT)
    k.salu("s_lshl_b32", s(sU), "s2", 2)
    k.salu("s_add_u32", s(sU), s(sU), s(sWave))
    k.salu("s_mul_i32", s(sCb64), s(sU), 911)
    k.salu("s_lshr_b32", s(sCb64), s(sCb64), 16)
    for u in range(1024):
        assert (u * 911) >> 16 == u // 72
    k.salu("s_mul_i32", s(sT0), s(sCb64), 72)
    k.salu("s_sub_u32", s(sOb), s(sU), s(sT0))
    k.salu("s_mov_b32", s(sC640), f32(1.0 / 640))
    k.wait_tag(vm="stat")
    ln_stats(k, v(vT + 2), v(vT + 3), v(vNm), v(vK1), v(vT), s(sC640))
    k.valu("v_mul_f32", v(vK2), v(vT), v(vT))
    k.valu("v_sub_f32", v(vNm), 0, v(vNm))
    k.valu("v_mul_f32", v(vK1), f32(-LOG2E), v(vK1))

    seq = []
    for st in range(10):
        for jl in range(4):
            for t in range(4):
                seq.append((st, t * 4096 + jl * 1024, t, 4 * st + jl))
    for sb in range(5):
        for jj in range(8):
            for t in range(2):
                w = (jj >> 2) * 2 + t
                seq.append((10 + sb, w * 4096 + (jj & 3) * 1024, 4 + t, 8 * sb + jj))
    for sc in range(3):
        for jj in range(16 if sc < 2 else 8):
            seq.append((15 + sc, (jj >> 2) * 4096 + (jj & 3) * 1024, 6, 16 * sc + jj))
    assert len(seq) == 280
    LOOK = cfg.get("k3_look", 8)

    def wread(n):
        st, off, t, J = seq[n]
        addr = (st % R) * 16384 + off
        k.ds_read("ds_read_b128", a(A_W + (n % NWB) * 4, 4), v(vRd + addr // 65536), addr % 65536, tag=("wf", n))

    def epi_ops(t, pk):
        A = ACC + 16 * t
        C = CSR + 16 * (t & 1)
        W = EW + 16 * (t & 1)
        ops = []
        for q in range(4):
            ops.append(lambda q=q: k.ds_read("ds_read_b128", v(C + 4 * q, 4), v(vCsA), t * 128 + q * 32, tag=("cs", t)))
        ops.append(lambda: k.wait_tag(lg=("cs", t)))
        for i in range(8):
            ops.append(lambda i=i: k.valu("v_fma_f32", v(A + i), v(vNm), v(C + i), v(A + i)))
        for i in range(8):
            ops.append(lambda i=i: k.valu("v_mul_f32", v(W + i), v(vK1), v(A + i)))
        for i in range(8):
            ops.append(lambda i=i: k.valu("v_exp_f32", v(W + i), v(W + i)))
            ops.append(lambda i=i: k.valu("v_fma_f32", v(A + 8 + i), v(vNm), v(C + 8 + i), v(A + 8 + i)))
        for i in range(8):
            ops.append(lambda i=i: k.valu("v_fma_f32", v(W + i), v(W + i), v(vK2), v(vK2)))
        for i in range(8):
            ops.append(lambda i=i: k.valu("v_rcp_f32", v(W + i), v(W + i)))
            ops.append(lambda i=i: k.valu("v_mul_f32", v(A + i), v(A + i), v(A + 8 + i)))
        for i in range(8):
            ops.append(lambda i=i: k.valu("v_mul_f32", v(A + i), v(A + i), v(W + i)))
        for i in range(4):
            ops.append(lambda i=i: k.valu("v_cvt_pk_bf16_f32", v(W + 8 + i), v(A + 2 * i), v(A + 2 * i + 1)))
        ops.append(lambda: k.bstore("buffer_store_dwordx4", v(W + 8, 4), v(vSt), s(S_WS, 4), s(sAct + t), tag="act"))
        return ops

    def retile_issue():
        ops = []

        def f0():
            k.salu("s_mul_i32", s(sT0), s(sOb), 24 * 1280)
            k.salu("s_lshl_b32", s(sT1), s(sCb64), 7)
            k.salu("s_add_u32", s(sT0), s(sT0), s(sT1))
            k.salu("s_cmp_ge_u32", s(sU), 720)
            k.salu("s_cselect_b32", s(sT0), OOB, s(sT0))
            k.valu("v_lshrrev_b32", v(vT), 3, v(vLane))
            k.valu("v_mul_u32_u24", v(vT), 1280, v(vT))
            k.valu("v_and_b32", v(vT + 1), 7, v(vLane))
            k.valu("v_lshl_add_u32", v(vT), v(vT + 1), 4, v(vT))
            k.salu("s_mul_i32", s(sT2), s(sWave), 3072)
        ops.append(f0)
        for o in range(3):
            def f(o=o):
                k.salu("s_add_u32", "m0", s(sT2), RT + o * 1024)
                k.salu("s_add_u32", s(sT1), s(sT0), o * 8 * 1280)
                k.dma(v(vT), s(S_WD, 4), s(sT1), tag="rt")
            ops.append(f)
        return ops

    k.wait_tag(vm=("st", 0))
    k.barrier()
    barred = 0
    nread = 0
    next_stage = PRE
    fill = []
    loads = []
    rt_issued = False
    for n in range(280):
        st, off, t, J = seq[n]
        while nread < min(280, n + LOOK + 1):
            ns = seq[nread][0]
            if ns > barred:
                assert ("st", ns) in k.vm and k.vm.count(("st", ns)) == (8 if ns < 10 else 4), (ns, k.vm)
                k.wait_tag(vm=("st", ns), lg=(lambda tg, ns=ns: isinstance(tg, tuple) and tg[0] == "wf" and seq[tg[1]][0] <= ns - 2))
                k.barrier()
                barred = ns
                while next_stage < NST and next_stage <= ns - 2 + R and next_stage <= ns + cfg.get("k3_depth", PRE) + (2 if ns >= 10 else 0):
                    loads += issue_stage(next_stage)
                    next_stage += 1
                if next_stage == NST and not rt_issued:
                    loads += retile_issue()
                    rt_issued = True
            wread(nread)
            nread += 1
        if n % 2 == 0:
            k.wait_tag(lg=("wf", n + 1))
        d = v(ACC + 16 * t, 16)
        k.mfma("32x32x16", d, a(A_W + (n % NWB) * 4, 4), a(A_H + 4 * J, 4), 0 if J == 0 else d)
        if n == 159:
            for tt in range(4):
                fill += epi_ops(tt, False)
            skip = 2
        if n == 239:
            for tt in range(4, 6):
                fill += epi_ops(tt, False)
        budget = 4
        if loads:
            loads.pop(0)()
            budget -= 2
        if n not in (159, 160, 239, 240):
            while budget > 0 and fill:
                fill.pop(0)()
                budget -= 1
    while loads:
        loads.pop(0)()
    while fill:
        fill.pop(0)()
    for f in epi_ops(6, True):
        f()
    R0 = ACC
    vRa, vCol, vTt, vSl = vT, vT + 1, vT + 2, vT + 3
    k.valu("v_bfe_u32", v(vRa), v(vLane), 2, 2)
    k.valu("v_lshlrev_b32", v(vRa), 7, v(vRa))
    k.valu("v_lshl_add_u32", v(vRa), v(vG16), 5, v(vRa))
    k.valu("v_and_b32", v(vCol), 3, v(vLane))
    k.valu("v_lshl_add_u32", v(vRa), v(vCol), 3, v(vRa))
    k.salu("s_mul_i32", s(sT2), s(sWave), 3072)
    k.salu("s_add_u32", s(sT2), s(sT2), RT)
    k.valu("v_add_u32", v(vRa), s(sT2), v(vRa))
    k.wait_tag(vm="rt")
    for o in range(3):
        for u in range(2):
            k.ds_read("ds_read_b64_tr_b16", v(R0 + 4 * o + 2 * u, 2), v(vRa), o * 1024 + u * 512, tag=("rr", o))
    k.salu("s_lshl_b32", s(sT0), s(sCb64), 6)
    k.valu("v_add_u32", v(vCol), s(sT0), v(vLane))
    k.valu("v_min_u32", v(vCol), 639, v(vCol))
    col_to_tile_slot(k, v(vCol), v(vTt), v(vSl), v(vT + 4), v(vT + 5), v(vT + 6))
    k.valu("v_lshlrev_b32", v(vTt), 10, v(vTt))
    k.valu("v_lshl_add_u32", v(vTt), v(vSl), 4, v(vTt))
    k.salu("s_mul_i32", s(sT2), s(sOb), 3)
    for o in range(3):
        k.salu("s_add_u32", s(sT0), s(sT2), o)
        k.salu("s_lshr_b32", s(sT1), s(sT0), 2)
        k.salu("s_mul_i32", s(sT1), s(sT1), 40960)
        k.salu("s_and_b32", s(sT0), s(sT0), 3)
        k.salu("s_lshl_b32", s(sT0), s(sT0), 8)
        k.salu("s_add_u32", s(sT0), s(sT0), s(sT1))
        k.salu("s_add_u32", s(sT0), s(sT0), WS_WDF)
        k.salu("s_cmp_ge_u32", s(sU), 720)
        k.salu("s_cselect_b32", s(sT0), OOB, s(sT0))
        k.wait_tag(lg=("rr", o))
        k.bstore("buffer_store_dwordx4", v(R0 + 4 * o, 4), v(vTt), s(S_WS, 4), s(sT0), tag="rs")
    k.label("L_end_k3_kernel")
    k.raw("s_endpgm", 4, "other")
    return k, NV, 160 + NWB * 4, LDS
```

```python
from common import *
from k2 import wg_map_2, h_chunk_addr, reduce_exchange, residual_pack, EX

K4_LDS = EX + 4 * 15360


def gen_k4(cfg):
    DB = cfg.get("k4_depth", 7)
    k = K("k4_kernel")
    S_WS, S_ACT, S_WD, S_OUT = 4, 8, 12, 16
    sWave, sRb2, sCb, sT0, sT1, sA, sW = range(48, 55)
    vLane, vG, vS, vL16 = 1, 2, 3, 4
    vAq = 5
    vW4 = 9
    vT = 10
    ACC = 16
    HR = 96
    OUTP, TMP = 112, 124
    vHA, vHB = 132, 133
    STG = 144
    NV = 204

    header(k, 256)
    k.sload(2, s(40, 2), "s[0:1]", 56)
    k.sload(2, s(46, 2), "s[0:1]", 72)
    k.valu("v_and_b32", v(vLane), 63, "v0")
    k.valu("v_lshrrev_b32", v(vT), 6, "v0")
    k.valu("v_readfirstlane_b32", s(sWave), v(vT))
    k.valu("v_lshrrev_b32", v(vG), 4, v(vLane))
    k.valu("v_and_b32", v(vS), 15, v(vLane))
    k.valu("v_lshlrev_b32", v(vL16), 4, v(vLane))
    wg_map_2(k, sRb2, sCb, sT0, sT1)
    for ap in range(4):
        k.salu("s_add_u32", s(sT0), s(sWave), ap)
        k.salu("s_and_b32", s(sT0), s(sT0), 3)
        k.salu("s_lshl_b32", s(sT0), s(sT0), 10)
        k.valu("v_add_u32", v(vAq + ap), s(sT0), v(vL16))
    k.valu("v_add_u32", v(vW4), 4096, v(vL16))
    k.salu("s_lshl_b32", s(sA), s(sWave), 17)
    k.salu("s_lshl_b32", s(sT0), s(sRb2), 12)
    k.salu("s_add_u32", s(sA), s(sA), s(sT0))
    k.salu("s_mul_i32", s(sW), s(sWave), 40960)
    k.salu("s_mul_i32", s(sT0), s(sCb), 5120)
    k.salu("s_add_u32", s(sW), s(sW), s(sT0))
    k.wait(lg=0)
    srd(k, S_WS, "s46", "s47", WS_SIZE)
    srd_off(k, S_ACT, "s46", "s47", WS_ACT, ACT_BYTES)
    srd_off(k, S_WD, "s46", "s47", WS_WDF, WDF_BYTES)
    srd(k, S_OUT, "s40", "s41", 2621440)

    def issue(i):
        b = (i % DB) * 36
        ops = []
        for T in range(5):
            def f(T=T):
                if T < 4:
                    k.bload("buffer_load_dwordx4", a(b + 16 + 4 * T, 4), v(vL16), s(S_WD, 4), s(sW), offset=T * 1024, tag=("st", i))
                else:
                    k.bload("buffer_load_dwordx4", a(b + 16 + 4 * T, 4), v(vW4), s(S_WD, 4), s(sW), tag=("st", i))
                    k.salu("s_add_u32", s(sW), s(sW), 4 * 40960)
            ops.append(f)
        for ap in range(4):
            def f(ap=ap):
                k.bload("buffer_load_dwordx4", a(b + 4 * ap, 4), v(vAq + ap), s(S_ACT, 4), s(sA), tag=("st", i))
                if ap == 3:
                    k.salu("s_add_u32", s(sA), s(sA), 4 * 131072)
            ops.append(f)
        return ops

    for i in range(DB):
        for f in issue(i):
            f()
    h_chunk_addr(k, vHA, vHB, vLane, vG, vS, sRb2, sCb, sWave, 134, sT0, sT1)
    pend = []
    for i in range(14):
        b = (i % DB) * 36
        while pend:
            pend.pop(0)()
        k.wait_tag(vm=("st", i))
        n = 0
        for ap in range(4):
            for T in range(5):
                d = v(ACC + (ap * 5 + T) * 4, 4)
                k.mfma("16x16x32", d, a(b + 16 + 4 * T, 4), a(b + 4 * ap, 4), 0 if i == 0 else d)
        if i + DB < 14:
            pend = issue(i + DB)
        if i + DB == 14:
            def hl():
                k.bload("buffer_load_dwordx4", v(HR, 4), v(vHA), s(S_WS, 4), 0, tag="h")
                k.bload("buffer_load_dwordx4", v(HR + 4, 4), v(vHA), s(S_WS, 4), 0, offset=2048, tag="h")
                k.bload("buffer_load_dwordx2", v(HR + 8, 2), v(vHB), s(S_WS, 4), 0, tag="h")
            pend = [hl]
    own = [ACC + 4 * T for T in range(5)]
    accs = {ap: [v(ACC + (ap * 5 + T) * 4, 4) for T in range(5)] for ap in range(1, 4)}
    reduce_exchange(k, accs, own, vL16, sWave, vT, sT0, STG)
    k.salu("s_lshl_b32", s(sT0), s(sRb2), 6)
    k.salu("s_lshl_b32", s(sT1), s(sWave), 4)
    k.salu("s_add_u32", s(sT0), s(sT0), s(sT1))
    k.salu("s_mul_i32", s(sT0), s(sT0), 1280)
    k.salu("s_mul_i32", s(sT1), s(sCb), 160)
    k.salu("s_add_u32", s(sT0), s(sT0), s(sT1))
    k.valu("v_mul_u32_u24", v(vT), 1280, v(vS))
    k.valu("v_lshl_add_u32", v(vT + 1), v(vG), 3, v(vT))
    k.valu("v_lshl_add_u32", v(vT), v(vG), 4, v(vT))
    k.wait_tag(vm="h")
    residual_pack(k, own, HR, OUTP, TMP)
    k.bstore("buffer_store_dwordx4", v(OUTP, 4), v(vT), s(S_OUT, 4), s(sT0), tag="o")
    k.bstore("buffer_store_dwordx4", v(OUTP + 4, 4), v(vT), s(S_OUT, 4), s(sT0), offset=64, tag="o")
    k.bstore("buffer_store_dwordx2", v(OUTP + 8, 2), v(vT + 1), s(S_OUT, 4), s(sT0), offset=128, tag="o")
    k.label("L_end_k4_kernel")
    k.raw("s_endpgm", 4, "other")
    return k, NV, DB * 36, K4_LDS
```

```python
import sys, json
from common import *
from k1 import gen_k1
from k2 import gen_k2
from k3 import gen_k3
from k4 import gen_k4

HDR = open("sequential_preLN__linear_attn_block__swiglu_ffn__prompt.s.ref").read().split("; Override launch")[0]

def build(cfg):
    ks = [gen_k1(cfg), gen_k2(cfg), gen_k3(cfg), gen_k4(cfg)]
    out = HDR
    for k, nv, na, lds in ks:
        out += "; @launch kernel=%s grid=(256,1,1) block=(256,1,1) lds=%d\n" % (k.name, lds)
    out += '.amdgcn_target "amdgcn-amd-amdhsa--gfx950"\n.text\n'
    for k, nv, na, lds in ks:
        k.hazards()
        if cfg.get("align", 1):
            k.align8()
        out += ".globl %s\n.p2align 8\n.type %s,@function\n%s:\n" % (k.name, k.name, k.name)
        out += k.text()
        sys.stderr.write("%s: %d bytes, %d instrs\n" % (k.name, k.size(), sum(1 for i in k.ins if i.size)))
    out += ".p2align 8\nL_code_end:\n    s_endpgm\n"
    out += '.section .rodata,"a"\n'
    for k, nv, na, lds in ks:
        out += descriptor(k.name, nv, na)
    return out

if __name__ == "__main__":
    cfg = json.loads(sys.argv[2]) if len(sys.argv) > 2 else {}
    open(sys.argv[1], "w").write(build(cfg))
```

```python
import struct
from emit import *


def f32(x):
    return struct.unpack("<I", struct.pack("<f", x))[0]


WS_PQ = 0x0
WS_H = 0x280000
WS_ACT = 0x500000
ACT_BYTES = 54 * 128 * 1024
WS_WOF = 0xC00000
WS_WGUF = 0xD00000
WS_WDF = 0x1200000
WDF_BYTES = 54 * 40 * 1024
WS_KV = 0x1500000
KV_BYTES = 32 * 420 * 4
WS_CS = 0x1510000
CS_BYTES = 108 * 32 * 4
WS_ST = WS_CS + 0x4000
ZERO_BYTES = 0x4000 + 2048 * 8
WS_TS = 0x1520000
WS_SIZE = 0x1800000
OOB = 0x7F000000

LOG2E = 1.4426950408889634
EPS6 = 1e-6
ONES_BF16 = 0x3F803F80


def srd(k, dst, lo, hi, size):
    k.salu("s_mov_b32", s(dst), lo)
    k.salu("s_mov_b32", s(dst + 1), hi)
    k.salu("s_mov_b32", s(dst + 2), size)
    k.salu("s_mov_b32", s(dst + 3), 0x20000)


def srd_off(k, dst, lo, hi, off, size):
    k.salu("s_add_u32", s(dst), lo, off)
    k.salu("s_addc_u32", s(dst + 1), hi, 0)
    k.salu("s_mov_b32", s(dst + 2), size)
    k.salu("s_mov_b32", s(dst + 3), 0x20000)


def divmagic(k, q, x, d, tmp_s, maxv):
    M = (65536 + d - 1) // d
    for t in range(maxv + 1):
        assert (t * M) >> 16 == t // d, (d, t)
    assert M < (1 << 24) and maxv * M < (1 << 32)
    k.valu("v_mul_u32_u24", q, M, x)
    k.valu("v_lshrrev_b32", q, 16, q)


def col_to_tile_slot(k, col, T, slot, t0, t1, t2):
    divmagic(k, T, col, 80, None, 639)
    k.valu("v_mul_u32_u24", t0, 80, T)
    k.valu("v_sub_u32", t0, col, t0)
    k.valu("v_mul_u32_u24", T, 5, T)
    k.valu("v_lshrrev_b32", t1, 5, t0)
    k.valu("v_lshlrev_b32", t1, 1, t1)
    k.valu("v_bfe_u32", t2, t0, 2, 1)
    k.valu("v_add_u32", t1, t1, t2)
    k.valu("v_bfe_u32", t2, t0, 3, 2)
    k.valu("v_lshlrev_b32", t2, 2, t2)
    k.valu("v_and_b32", slot, 3, t0)
    k.valu("v_add_u32", slot, slot, t2)
    k.valu("v_cmp_le_u32", "vcc", 64, t0)
    k.valu("v_cndmask_b32", t1, t1, 4, "vcc")
    k.valu("v_and_b32", t2, 15, t0)
    k.valu("v_cndmask_b32", slot, slot, t2, "vcc")
    k.valu("v_add_u32", T, T, t1)


def py_col_to_tile_slot(col):
    cb, c = divmod(col, 80)
    if c >= 64:
        return 5 * cb + 4, c - 64
    p, w = divmod(c, 32)
    return 5 * cb + 2 * p + ((w >> 2) & 1), 4 * (w >> 3) + (w & 3)


def bf16_round(k, dst, src, tmp=None):
    k.valu("v_cvt_pk_bf16_f32", dst, src, src)
    k.valu("v_lshlrev_b32", dst, 16, dst)


def xsum_g(k, x, t):
    k.valu("v_mov_b32", t, x)
    k.valu("v_permlane32_swap_b32", x, t)
    k.valu("v_add_f32", x, x, t)
    k.valu("v_mov_b32", t, x)
    k.valu("v_permlane16_swap_b32", x, t)
    k.valu("v_add_f32", x, x, t)


def xsum_g2(k, x, t, y, u):
    for op in ("v_permlane32_swap_b32", "v_permlane16_swap_b32"):
        k.valu("v_mov_b32", t, x)
        k.valu("v_mov_b32", u, y)
        k.valu(op, x, t)
        k.valu(op, y, u)
        k.valu("v_add_f32", x, x, t)
        k.valu("v_add_f32", y, y, u)


def ln_stats(k, sm, sq, mean_out, rstd_out, t0, sC):
    k.valu("v_mul_f32", sm, sC, sm)
    k.valu("v_mul_f32", sq, sC, sq)
    k.valu("v_fma_f32", sq, "-" + sm, sm, sq)
    k.valu("v_max_f32", sq, 0, sq)
    bf16_round(k, mean_out, sm)
    bf16_round(k, t0, sq)
    k.valu("v_add_f32", t0, f32(1e-5), t0)
    bf16_round(k, t0, t0)
    k.valu("v_sqrt_f32", t0, t0)
    bf16_round(k, t0, t0)
    k.valu("v_rcp_f32", rstd_out, t0)


def header(k, nwg):
    k.salu("s_cmp_ge_u32", "s2", nwg)
    k.branch("s_cbranch_scc1", "L_end_" + k.name)


def descriptor(name, nvgpr, nagpr, nsgpr=102):
    acc = (nvgpr + 3) // 4 * 4
    tot = acc + nagpr if nagpr else nvgpr
    return """.p2align 6
.amdhsa_kernel %s
  .amdhsa_next_free_vgpr %d
  .amdhsa_next_free_sgpr %d
  .amdhsa_accum_offset %d
  .amdhsa_group_segment_fixed_size 0
  .amdhsa_kernarg_size 80
  .amdhsa_user_sgpr_count 2
  .amdhsa_user_sgpr_kernarg_segment_ptr 1
  .amdhsa_system_sgpr_workgroup_id_x 1
.end_amdhsa_kernel
""" % (name, tot, nsgpr, acc)
```

```python
import re


def v(n, c=1):
    return ("v%d" % n) if c == 1 else "v[%d:%d]" % (n, n + c - 1)


def a(n, c=1):
    return ("a%d" % n) if c == 1 else "a[%d:%d]" % (n, n + c - 1)


def s(n, c=1):
    return ("s%d" % n) if c == 1 else "s[%d:%d]" % (n, n + c - 1)


_REG = re.compile(r"^-?(?:abs\()?([vas])(?:(\d+)|\[(\d+):(\d+)\])\)?$")


def regs_of(op):
    if not isinstance(op, str):
        return []
    op = op.strip()
    if op in ("vcc", "exec", "m0", "scc"):
        return [op]
    if op in ("vcc_lo", "vcc_hi"):
        return ["vcc"]
    if op in ("exec_lo", "exec_hi"):
        return ["exec"]
    m = _REG.match(op)
    if not m:
        return []
    k = m.group(1)
    if m.group(2) is not None:
        return [k + m.group(2)]
    return [k + str(i) for i in range(int(m.group(3)), int(m.group(4)) + 1)]


INLINE_F = {"0.5", "-0.5", "1.0", "-1.0", "2.0", "-2.0", "4.0", "-4.0"}


def is_literal(op):
    if isinstance(op, int):
        return not (-16 <= op <= 64)
    if isinstance(op, float):
        return True
    if isinstance(op, str):
        if regs_of(op) or op in INLINE_F or op in ("off",):
            return False
        try:
            x = int(op, 0)
            return not (-16 <= x <= 64)
        except ValueError:
            return True
    return False


def fmt(op):
    if isinstance(op, int):
        return str(op) if -16 <= op <= 64 else ("0x%x" % (op & 0xFFFFFFFF))
    return str(op)


TRANS = ("v_exp_f32", "v_log_f32", "v_rcp_f32", "v_rsq_f32", "v_sqrt_f32", "v_sin_f32", "v_cos_f32")
VOP3_ONLY = (
    "v_fma_f32", "v_mad_u32_u24", "v_mul_lo_u32", "v_mul_hi_u32", "v_add3_u32", "v_lshl_add_u32", "v_add_lshl_u32",
    "v_and_or_b32", "v_bfe_u32", "v_lshl_or_b32", "v_perm_b32", "v_cvt_pk_bf16_f32", "v_med3_f32", "v_max3_f32",
    "v_pk_mul_f32", "v_pk_fma_f32", "v_pk_add_f32", "v_accvgpr_read_b32", "v_accvgpr_write_b32", "v_dot2_f32_bf16",
    "v_or3_b32", "v_xad_u32", "v_mbcnt_lo_u32_b32", "v_mbcnt_hi_u32_b32", "v_readlane_b32", "v_writelane_b32",
    "v_bfi_b32", "v_min3_f32", "v_mad_i32_i24", "v_pk_mov_b32",
)


class Ins:
    __slots__ = ("text", "size", "kind", "rd", "wr", "meta", "widen")

    def __init__(self, text, size, kind, rd=(), wr=(), meta=None, widen=None):
        self.text, self.size, self.kind = text, size, kind
        self.rd, self.wr = set(rd), set(wr)
        self.meta = meta or {}
        self.widen = widen


class K:
    def __init__(self, name):
        self.name = name
        self.ins = []
        self.vm = []
        self.lg = []

    def raw(self, text, size=4, kind="other", rd=(), wr=(), meta=None):
        self.ins.append(Ins(text, size, kind, rd, wr, meta))

    def label(self, name):
        self.ins.append(Ins(name + ":", 0, "label"))

    def comment(self, t):
        self.ins.append(Ins("; " + t, 0, "comment"))

    def valu(self, op, dst, *srcs, mods="", rmw=False, extra_rd=(), extra_wr=()):
        rd = []
        for x in srcs:
            rd += regs_of(x)
        wr = regs_of(dst)
        if rmw or op in ("v_fmac_f32", "v_dot2c_f32_bf16"):
            rd += wr
        rd += list(extra_rd)
        wr = wr + list(extra_wr)
        lit = any(is_literal(x) for x in srcs)
        e64 = op in VOP3_ONLY or mods != "" or any(isinstance(x, str) and (x.startswith("-v") or x.startswith("-s") or x.startswith("abs") or x.startswith("-a")) for x in srcs)
        if len(srcs) >= 2 and not e64 and not op.startswith("v_cmp") and op != "v_cndmask_b32":
            r1 = regs_of(srcs[1])
            if not r1 or r1[0][0] != "v" or r1[0] in ("vcc",):
                e64 = True
        if op.startswith("v_cmp"):
            if dst != "vcc":
                e64 = True
            r1 = regs_of(srcs[1])
            if not r1 or r1[0][0] != "v":
                e64 = True
        if op == "v_cndmask_b32":
            if srcs[2] != "vcc":
                e64 = True
            r1 = regs_of(srcs[1])
            if not r1 or r1[0][0] != "v":
                e64 = True
        if op in ("v_fmaak_f32", "v_fmamk_f32"):
            size = 8
        elif e64:
            assert not lit, "literal in VOP3: %s %s" % (op, srcs)
            size = 8
        else:
            size = 8 if lit else 4
        kind = "valu"
        if op in TRANS:
            kind = "trans"
        elif op.startswith("v_dot"):
            kind = "dot"
        elif op.startswith("v_permlane"):
            kind = "permlane"
            rd += wr + regs_of(srcs[0])
            wr = wr + regs_of(srcs[0])
        elif op in ("v_readfirstlane_b32", "v_readlane_b32"):
            kind = "readlane"
        body = ", ".join([fmt(dst)] + [fmt(x) for x in srcs])
        text = "%s %s%s" % (op, body, (" " + mods) if mods else "")
        widen = None
        if size == 4 and kind in ("valu", "trans") and op not in ("v_readfirstlane_b32",):
            widen = "%s_e64 %s" % (op, body)
        self.ins.append(Ins(text, size, kind, rd, wr, {"op": op}, widen))

    def mfma(self, shape, d, A, B, C):
        op = "v_mfma_f32_%s_bf16" % shape
        p = 4 if shape == "16x16x32" else 8
        rd = regs_of(A) + regs_of(B) + regs_of(C)
        self.ins.append(Ins("%s %s, %s, %s, %s" % (op, d, A, B, fmt(C)), 8, "mfma", rd, regs_of(d),
                            {"pass": p, "ab": set(regs_of(A) + regs_of(B)), "c": regs_of(C), "d": regs_of(d)}))

    def salu(self, op, dst, *srcs):
        rd = []
        for x in srcs:
            rd += regs_of(x)
        wr = regs_of(dst) if dst is not None else []
        lit = any(is_literal(x) for x in srcs)
        if op.startswith("s_cmp"):
            allops = [dst] + list(srcs)
            rd = []
            for x in allops:
                rd += regs_of(x)
            wr = ["scc"]
            lit = any(is_literal(x) for x in allops)
            text = "%s %s" % (op, ", ".join(fmt(x) for x in allops))
        else:
            text = "%s %s" % (op, ", ".join([fmt(dst)] + [fmt(x) for x in srcs]))
        if op in ("s_movk_i32", "s_addk_i32", "s_mulk_i32"):
            lit = False
        self.ins.append(Ins(text, 8 if lit else 4, "salu", rd, wr))

    def sload(self, n, dst, base, off):
        op = {1: "s_load_dword", 2: "s_load_dwordx2", 4: "s_load_dwordx4", 8: "s_load_dwordx8", 16: "s_load_dwordx16"}[n]
        self.ins.append(Ins("%s %s, %s, 0x%x" % (op, dst, base, off), 8, "smem", regs_of(base), regs_of(dst)))

    def stamp(self, i):
        if not getattr(self, "diag", False):
            return
        self.raw("s_memrealtime s[96:97]", 8, "smem", wr=["s96", "s97"])
        self.raw("s_waitcnt lgkmcnt(0)", 4, "wait")
        self.lg = []
        self.raw("v_writelane_b32 %s, s96, %d" % (self.diagv, i), 8, "valu", rd=["s96"], wr=[self.diagv])
        if i in (0, 15):
            self.raw("s_memtime s[96:97]", 8, "smem", wr=["s96", "s97"])
            self.raw("s_waitcnt lgkmcnt(0)", 4, "wait")
            self.raw("v_writelane_b32 %s, s96, %d" % (self.diagv, 13 if i == 0 else 14), 8, "valu", rd=["s96"], wr=[self.diagv])

    def stamp_flush(self, kidx, ws_lo, ws_hi, tsoff, vtmp, vlane, wshift=9):
        if not getattr(self, "diag", False):
            return
        self.stamp(15)
        self.salu("s_add_u32", "s96", ws_lo, tsoff + kidx * 262144)
        self.salu("s_addc_u32", "s97", ws_hi, 0)
        self.salu("s_mov_b32", "s98", 262144)
        self.salu("s_mov_b32", "s99", 0x20000)
        self.valu("v_lshrrev_b32", vtmp, 6, "v0")
        self.valu("v_lshlrev_b32", vtmp, 6, vtmp)
        self.valu("v_lshl_add_u32", vtmp, vlane, 2, vtmp)
        self.salu("s_lshl_b32", "s100", "s2", 10)
        self.valu("v_mov_b32", "v0", 0x7f000000)
        self.valu("v_cmp_gt_u32", "vcc", 16, vlane)
        self.valu("v_cndmask_b32", vtmp, "v0", vtmp, "vcc")
        self.bstore("buffer_store_dword", self.diagv, vtmp, "s[96:99]", "s100")

    def nop(self, n=0):
        self.ins.append(Ins("s_nop %d" % n, 4, "nop", meta={"n": n + 1}))

    def barrier(self):
        self.raw("s_barrier", 4, "barrier")

    def branch(self, op, target):
        self.raw("%s %s" % (op, target), 4, "branch")

    def ds_read(self, op, dst, addr, offset=0, tag=None):
        assert 0 <= offset <= 65535, offset
        self.ins.append(Ins("%s %s, %s%s" % (op, dst, addr, (" offset:%d" % offset) if offset else ""), 8, "ds",
                            regs_of(addr), regs_of(dst), {"load": True}))
        self.lg.append(tag)

    def ds_write(self, op, addr, data, offset=0, tag=None):
        assert 0 <= offset <= 65535, offset
        self.ins.append(Ins("%s %s, %s%s" % (op, addr, data, (" offset:%d" % offset) if offset else ""), 8, "ds",
                            regs_of(addr) + regs_of(data), []))
        self.lg.append(tag)

    def _mub(self, voff, srd, soff, offset, flags):
        assert 0 <= offset <= 4095, offset
        return "%s, %s, %s offen%s%s" % (voff, srd, fmt(soff), (" offset:%d" % offset) if offset else "", (" " + flags) if flags else "")

    def bload(self, op, dst, voff, srd, soff=0, offset=0, flags="", tag=None):
        self.ins.append(Ins("%s %s, %s" % (op, dst, self._mub(voff, srd, soff, offset, flags)), 8, "vmem",
                            regs_of(voff) + regs_of(srd) + regs_of(soff), regs_of(dst), {"load": True}))
        self.vm.append(tag)

    def dma(self, voff, srd, soff=0, offset=0, flags="", tag=None):
        fl = (flags + " lds").strip()
        self.ins.append(Ins("buffer_load_dwordx4 %s" % self._mub(voff, srd, soff, offset, fl), 8, "vmem",
                            regs_of(voff) + regs_of(srd) + regs_of(soff) + ["m0"], [], {"dma": True}))
        self.vm.append(tag)

    def bstore(self, op, data, voff, srd, soff=0, offset=0, flags="", tag=None, ret=False):
        wide = op.endswith("x4") or op.endswith("x3")
        self.ins.append(Ins("%s %s, %s" % (op, data, self._mub(voff, srd, soff, offset, flags)), 8, "vmem",
                            regs_of(data) + regs_of(voff) + regs_of(srd) + regs_of(soff), regs_of(data) if ret else [],
                            {"widestore": set(regs_of(data)) if wide else None, "load": ret}))
        self.vm.append(tag)

    def wait(self, vm=None, lg=None):
        parts = []
        if vm is not None:
            vm = min(vm, 63)
            parts.append("vmcnt(%d)" % vm)
            if len(self.vm) > vm:
                self.vm = self.vm[len(self.vm) - vm:] if vm else []
        if lg is not None:
            lg = min(lg, 15)
            parts.append("lgkmcnt(%d)" % lg)
            if len(self.lg) > lg:
                self.lg = self.lg[len(self.lg) - lg:] if lg else []
        self.raw("s_waitcnt " + " ".join(parts), 4, "wait")

    def _need(self, lst, pred):
        last = -1
        for i, t in enumerate(lst):
            if pred(t):
                last = i
        return None if last < 0 else len(lst) - 1 - last

    def wait_tag(self, vm=None, lg=None):
        def mk(x):
            return x if callable(x) else (lambda t: t == x)
        nv = self._need(self.vm, mk(vm)) if vm is not None else None
        nl = self._need(self.lg, mk(lg)) if lg is not None else None
        if nv is None and nl is None:
            return
        self.wait(nv, nl)

    def hazards(self):
        out = []
        pos = 0
        lastw = {}
        mfma_c = []
        wstores = []

        def need(ins):
            req = 0
            k = ins.kind
            isvalu = k in ("valu", "trans", "dot", "permlane", "readlane")
            for r in ins.rd | ins.wr:
                if r not in lastw:
                    continue
                p, w = lastw[r]
                isrd = r in ins.rd
                d = 0
                if w.kind == "mfma":
                    ps = w.meta["pass"]
                    if k == "mfma":
                        if r in ins.meta["ab"]:
                            d = max(d, 8 if ps == 4 else 12)
                        if r in ins.meta["c"]:
                            if ins.meta["c"] == w.meta["d"] and ins.meta["pass"] == ps:
                                pass
                            else:
                                d = max(d, 6 if ps == 4 else 10)
                        if (not isrd) and ins.meta["d"] != w.meta["d"]:
                            d = max(d, 6 if ps == 4 else 10)
                    elif isvalu or k in ("ds", "vmem"):
                        d = max(d, 8 if ps == 4 else 12)
                elif w.kind in ("valu", "trans", "dot", "permlane", "readlane"):
                    if r[0] in "va" and r not in ("vcc",):
                        if k == "mfma" and isrd:
                            d = max(d, 2)
                        if w.kind == "trans" and isvalu and k != "trans" and isrd:
                            d = max(d, 1)
                        if w.kind == "trans" and k == "trans" and isrd:
                            d = max(d, 1)
                        if k == "readlane" and isrd:
                            d = max(d, 1)
                        if k == "permlane":
                            d = max(d, 2)
                        if w.kind == "dot":
                            same = k == "dot" and ins.meta.get("op") == w.meta.get("op") and r in ins.wr
                            if not same:
                                d = max(d, 3)
                    else:
                        if isvalu and isrd:
                            d = max(d, 2 if k != "readlane" else 4)
                        if k == "vmem" and isrd:
                            d = max(d, 5)
                        if k in ("salu", "branch", "smem") and isrd:
                            d = max(d, 2)
                elif w.kind == "salu":
                    if r == "m0" and ins.meta.get("dma"):
                        d = max(d, 1)
                if d:
                    req = max(req, p + d + 1)
            if isvalu:
                for p, regs, ps in mfma_c:
                    if ins.wr & regs:
                        req = max(req, p + (3 if ps == 4 else 7) + 1)
            for p, regs in wstores:
                if ins.wr & regs:
                    req = max(req, p + (2 if isvalu else 1) + 1)
            return req

        for ins in self.ins:
            if ins.kind in ("label", "comment"):
                out.append(ins)
                continue
            req = need(ins)
            if req > pos:
                n = req - pos
                while n > 0:
                    m = min(n, 16)
                    out.append(Ins("s_nop %d" % (m - 1), 4, "nop", meta={"n": m}))
                    pos += m
                    n -= m
            out.append(ins)
            for r in ins.wr:
                lastw[r] = (pos, ins)
            if ins.kind == "mfma" and ins.meta["c"]:
                mfma_c.append((pos, set(ins.meta["c"]), ins.meta["pass"]))
                mfma_c = mfma_c[-8:]
            if ins.meta.get("widestore"):
                wstores.append((pos, ins.meta["widestore"]))
                wstores = wstores[-4:]
            pos += ins.meta["n"] if ins.kind == "nop" else 1
        self.ins = out

    def align8(self, min_run=3):
        out = []
        off = 0
        n = len(self.ins)
        i = 0
        last4 = None
        while i < n:
            ins = self.ins[i]
            if ins.size == 8 and off % 8 == 4:
                run = 0
                j = i
                while j < n and self.ins[j].size in (0, 8):
                    run += 1 if self.ins[j].size == 8 else 0
                    j += 1
                if run >= 1 and last4 is not None and out[last4].widen:
                    out[last4].text = out[last4].widen
                    out[last4].size = 8
                    out[last4].widen = None
                    off += 4
                elif run >= min_run:
                    out.append(Ins("s_nop 0", 4, "nop", meta={"n": 1}))
                    off += 4
            out.append(ins)
            if ins.size == 4:
                last4 = len(out) - 1
            elif ins.size == 8:
                last4 = None
            off += ins.size
            i += 1
        self.ins = out
        return off

    def text(self):
        lines = []
        for ins in self.ins:
            if ins.kind == "label":
                lines.append(ins.text)
            else:
                lines.append("    " + ins.text)
        return "\n".join(lines) + "\n"

    def size(self):
        return sum(i.size for i in self.ins)
```

```python
from common import *

BOFF = 16384
SLOT = BOFF + 64 * 336
NSLOT = 4
SCR = NSLOT * SLOT
K1_LDS = 163840
KVP = 168
KVT = 128 * KVP
KVL = SCR + 2048


def gen_k1(cfg):
    k = K("k1_kernel")
    S_X, S_W, S_WS, S_DBG, S_CODE, S_A, S_B = 4, 8, 12, 16, 20, 24, 28
    sWave, sRb, sCg, sA, sB, sT0, sT1, sWm, sWn, sLA, sLB, sRole, sJJ, sXcd = range(52, 66)
    sRot, sKVo, sC640, sOld, sFlagOff, sCnt, sQ0, sQ1, sKV1, sT2 = range(66, 76)
    sMask = 76
    sAq, sBq0, sBq1 = 86, 87, 88
    sLw = 89
    vLane, vG, vS = 1, 2, 3
    vX = 4
    vWb = 8
    vKA = 12
    vQ = 16
    vAa, vB0a, vB1a, vO0, vO1 = 16, 17, 18, 19, 20
    vStW, vStR, vCsW, vCsR = 21, 22, 23, 24
    vFlag, vOld = 25, 26
    vPk = 36
    vOnes = 28
    vE, vL = 32, 34
    vM = [40, 42, 44, 46]
    ACC = 48
    CSL = 128
    RS = 148
    XF = 164
    WF = 196
    WC = 236
    NV = 240
    vT = XF
    CS = [CSL + 4 * i for i in range(5)]

    def acc(ap, b):
        return ACC + (ap * 5 + b) * 4

    header(k, 256)
    k.diag = cfg.get("diag", False); k.diagv = "v39"
    if k.diag:
        k.valu("v_mov_b32", k.diagv, 0)
    k.stamp(0)
    k.sload(16, s(32, 16), "s[0:1]", 0)
    k.sload(4, s(48, 4), "s[0:1]", 64)
    k.raw("s_getpc_b64 s[90:91]", 4, "salu", wr=["s90", "s91"])
    k.label("L_pc_k1")
    k.valu("v_and_b32", v(vLane), 63, "v0")
    k.valu("v_lshrrev_b32", v(vT), 6, "v0")
    k.valu("v_readfirstlane_b32", s(sWave), v(vT))
    k.valu("v_lshrrev_b32", v(vG), 4, v(vLane))
    k.valu("v_and_b32", v(vS), 15, v(vLane))
    k.salu("s_and_b32", s(sXcd), "s2", 7)
    k.salu("s_lshr_b32", s(sJJ), "s2", 3)
    k.salu("s_sub_u32", s(S_CODE), "s90", "(L_pc_k1-k1_kernel)")
    k.salu("s_subb_u32", s(S_CODE + 1), "s91", 0)
    k.salu("s_mov_b32", s(S_CODE + 2), "(L_code_end-k1_kernel)")
    k.salu("s_mov_b32", s(S_CODE + 3), 0x20000)
    k.salu("s_cmp_ge_u32", s(sJJ), 24)
    k.branch("s_cbranch_scc1", "L_k1_rt")
    k.salu("s_cmp_ge_u32", s(sJJ), 16)
    k.salu("s_cselect_b32", s(sRole), 1, 0)
    k.salu("s_lshr_b32", s(sRb), s(sXcd), 1)
    k.salu("s_lshl_b32", s(sRb), s(sRb), 2)
    k.salu("s_and_b32", s(sT2), s(sXcd), 1)
    k.salu("s_lshr_b32", s(sT0), s(sJJ), 2)
    k.salu("s_and_b32", s(sT1), s(sJJ), 3)
    k.salu("s_lshl_b32", s(sCg), s(sT2), 2)
    k.salu("s_add_u32", s(sCg), s(sCg), s(sT1))
    k.salu("s_and_b32", s(sA), s(sJJ), 7)
    k.salu("s_lshr_b32", s(sA), s(sA), 1)
    k.salu("s_and_b32", s(sB), s(sJJ), 1)
    k.salu("s_lshl_b32", s(sT1), s(sT2), 1)
    k.salu("s_add_u32", s(sB), s(sB), s(sT1))
    k.salu("s_cmp_eq_u32", s(sRole), 1)
    k.salu("s_cselect_b32", s(sT0), s(sA), s(sT0))
    k.salu("s_cselect_b32", s(sCg), s(sB), s(sCg))
    k.salu("s_add_u32", s(sRb), s(sRb), s(sT0))
    k.valu("v_mov_b32", v(vT), OOB)
    k.valu("v_cmp_eq_u32", "vcc", 0, v(vLane))
    k.valu("v_cndmask_b32", v(vFlag), v(vT), 0, "vcc")
    k.salu("s_lshl_b32", s(sCnt), s(sCg), 3)
    k.salu("s_add_u32", s(sFlagOff), s(sCnt), 4)
    k.salu("s_cmp_lt_u32", s(sWave), 4)
    k.branch("s_cbranch_scc1", "L_k1_comp")

    vDA, vDB, vZero = 48, 52, 60
    k.salu("s_sub_u32", s(sLw), s(sWave), 4)
    k.valu("v_lshrrev_b32", v(vT), 3, v(vLane))
    k.valu("v_mul_u32_u24", v(vT), 1280, v(vT))
    k.valu("v_and_b32", v(vT + 1), 7, v(vLane))
    k.valu("v_xor_b32", v(vT + 1), v(vT + 1), v(vG))
    k.valu("v_xor_b32", v(vT + 2), 4, v(vT + 1))
    k.valu("v_lshl_add_u32", v(vT + 3), v(vT + 1), 4, v(vT))
    k.valu("v_lshl_add_u32", v(vT + 4), v(vT + 2), 4, v(vT))
    k.salu("s_mul_i32", s(sT0), s(sLw), 4 * 8 * 1280)
    for q in range(4):
        k.valu("v_add_u32", v(vDA + q), s(sT0), v(vT + 3 + (q & 1)))
        if q < 3:
            k.salu("s_add_u32", s(sT0), s(sT0), 8 * 1280)
    k.salu("s_mul_i32", s(sA), s(sRb), 128 * 1280)
    k.salu("s_mul_i32", s(sB), s(sCg), 160)
    k.salu("s_lshl_b32", s(sB), s(sB), s(sRole))
    k.salu("s_lshl_b32", s(sT0), s(sCg), s(sRole))
    k.salu("s_add_u32", s(sT0), s(sT0), s(sRb))
    k.salu("s_and_b32", s(sT0), s(sT0), 3)
    k.salu("s_lshl_b32", s(sT0), s(sT0), 3)
    k.salu("s_lshr_b32", s(sRot), cfg.get("k1_rot", 0), s(sT0))
    k.salu("s_and_b32", s(sRot), s(sRot), 15)
    k.salu("s_lshl_b32", s(sT0), s(sRot), 7)
    k.salu("s_add_u32", s(sA), s(sA), s(sT0))
    k.salu("s_mul_i32", s(sT0), s(sRot), 64 * 3840)
    k.salu("s_add_u32", s(sB), s(sB), s(sT0))
    k.salu("s_lshl_b32", s(sLA), s(sLw), 12)
    k.salu("s_lshl_b32", s(sLB), s(sLw), 10)
    k.salu("s_add_u32", s(sLB), s(sLB), BOFF)
    for sl in range(NSLOT):
        k.salu("s_add_u32", s(S_A + sl), s(sLB), sl * SLOT + 5 * 4096)
        k.salu("s_cmp_ge_u32", s(sLw), 1)
        k.salu("s_cselect_b32", s(S_A + sl), 0x30000, s(S_A + sl))
    k.wait(lg=0)
    srd(k, S_X, "s32", "s33", 2621440)
    srd(k, S_W, "s34", "s35", 2457600)

    def issue_a(t):
        slot = (t % NSLOT) * SLOT
        for q in range(4):
            k.salu("s_add_u32", "m0", s(sLA), slot + q * 1024)
            k.dma(v(vDA + q), s(S_X, 4), s(sA), tag=("st", t))

    def issue_b(t):
        slot = (t % NSLOT) * SLOT
        for q in range(5):
            k.salu("s_add_u32", "m0", s(sLB), slot + q * 4096)
            k.dma(v(vDB + q), s(S_W, 4), s(sB), tag=("st", t))
        k.salu("s_mov_b32", "m0", s(S_A + t % NSLOT))
        k.dma(v(vDB + 5), s(S_W, 4), s(sB), tag=("st", t))
        k.salu("s_add_u32", s(sA), s(sA), 128)
        k.salu("s_add_u32", s(sB), s(sB), 64 * 3840)
        k.salu("s_add_u32", s(sRot), s(sRot), 1)
        k.salu("s_cmp_eq_u32", s(sRot), 10)
        k.salu("s_cselect_b32", s(sT2), 1280, 0)
        k.salu("s_cselect_b32", s(sT1), 640 * 3840, 0)
        k.salu("s_sub_u32", s(sA), s(sA), s(sT2))
        k.salu("s_sub_u32", s(sB), s(sB), s(sT1))

    issue_a(0)
    k.salu("s_cmp_eq_u32", s(sRole), 1)
    k.salu("s_cselect_b64", s(sMask, 2), -1, 0)
    k.salu("s_lshl_b32", s(sT0), s(sLw), 6)
    for i in range(1, 6):
        k.valu("v_mov_b32", v(vDB + i), 0)
    k.valu("v_mov_b32", v(vT + 7), OOB)
    k.label("L_k1_wl")
    k.valu("v_add_u32", v(vT), s(sT0), v(vLane))
    divmagic(k, v(vT + 1), v(vT), 21, None, 1535)
    k.valu("v_mul_u32_u24", v(vT + 2), 21, v(vT + 1))
    k.valu("v_sub_u32", v(vT + 2), v(vT), v(vT + 2))
    k.valu("v_and_b32", v(vT + 3), 32, v(vT + 1))
    k.valu("v_bfe_u32", v(vT + 4), v(vT + 1), 3, 2)
    k.valu("v_lshl_add_u32", v(vT + 3), v(vT + 4), 3, v(vT + 3))
    k.valu("v_and_b32", v(vT + 4), 1, v(vT + 1))
    k.valu("v_lshl_add_u32", v(vT + 3), v(vT + 4), 2, v(vT + 3))
    k.valu("v_bfe_u32", v(vT + 4), v(vT + 1), 1, 2)
    k.valu("v_add_u32", v(vT + 3), v(vT + 3), v(vT + 4))
    k.valu("v_mul_u32_u24", v(vT + 3), 3840, v(vT + 3))
    divmagic(k, v(vT + 4), v(vT + 2), 5, None, 31)
    k.valu("v_and_b32", v(vT + 5), 1, v(vT + 4))
    k.valu("v_mul_u32_u24", v(vT + 5), 1200, v(vT + 5))
    k.valu("v_lshrrev_b32", v(vT + 6), 1, v(vT + 4))
    k.valu("v_mul_u32_u24", v(vT + 6), 80, v(vT + 6))
    k.valu("v_sub_u32", v(vT + 5), v(vT + 5), v(vT + 6))
    k.valu("v_add_u32", v(vT + 5), 1280, v(vT + 5))
    k.valu("v_cndmask_b32", v(vT + 5), v(vT + 5), 0, s(sMask, 2))
    k.valu("v_lshl_add_u32", v(vT + 3), v(vT + 2), 4, v(vT + 3))
    k.valu("v_add_u32", v(vT + 3), v(vT + 3), v(vT + 5))
    k.valu("v_cmp_eq_u32", "vcc", 20, v(vT + 2))
    k.valu("v_cmp_le_u32", s(sMask + 2, 2), 64, v(vT + 1))
    for i in range(5):
        k.valu("v_mov_b32", v(vDB + i), v(vDB + i + 1))
    k.salu("s_or_b64", "vcc", "vcc", s(sMask + 2, 2))
    k.valu("v_cndmask_b32", v(vDB + 5), v(vT + 3), v(vT + 7), "vcc")
    k.salu("s_add_u32", s(sT0), s(sT0), 256)
    k.salu("s_cmp_lt_u32", s(sT0), 1536)
    k.branch("s_cbranch_scc1", "L_k1_wl")
    issue_b(0)
    srd(k, S_DBG, "s48", "s49", 256)
    srd(k, S_WS, "s50", "s51", WS_SIZE)
    k.valu("v_mov_b32", v(vOld), 1)
    k.salu("s_or_b32", s(sT0), s(sRole), s(sLw))
    k.salu("s_cmp_lg_u32", s(sT0), 0)
    k.branch("s_cbranch_scc1", "L_k1_noat")
    k.raw("buffer_atomic_add %s, %s, %s, %s offen sc0" % (v(vOld), v(vFlag), s(S_DBG, 4), s(sCnt)), 8, "vmem",
          rd=[v(vOld), v(vFlag), s(sCnt)] + regs_of(s(S_DBG, 4)), wr=[v(vOld)])
    k.label("L_k1_noat")
    LPRE = cfg.get("k1_pre", 2)
    for t in range(1, LPRE):
        issue_a(t)
        issue_b(t)
    k.stamp(1)
    for i in range(4):
        k.valu("v_mov_b32", v(vZero + i), 0)
    k.valu("v_lshlrev_b32", v(vT), 4, v(vLane))
    k.valu("v_cmp_gt_u32", "vcc", 36, v(vLane))
    k.valu("v_cndmask_b32", v(vT + 1), v(vT + 7), v(vT), "vcc")
    k.salu("s_mul_i32", s(sKVo), s(sCg), 6720)
    k.salu("s_add_u32", s(sKVo), s(sKVo), WS_KV)
    k.salu("s_add_u32", s(sKV1), s(sKVo), 4096)
    nxt = LPRE
    for t in range(10):
        k.wait_tag(vm=("st", t))
        k.barrier()
        if t == 1:
            zst = nxt
            k.valu("v_readfirstlane_b32", s(sOld), v(vOld))
            k.salu("s_cmp_lg_u32", s(sOld), 0)
            k.branch("s_cbranch_scc1", "L_k1_noz")
            for i in range(7):
                k.raw("buffer_store_dwordx4 %s, %s, %s, %s offen offset:%d sc0 sc1" % (
                    v(vZero, 4), v(vT + 1 if i == 6 else vT), s(S_WS, 4), s(sKVo if i < 4 else sKV1), (i % 4) * 1024), 8, "vmem",
                    rd=regs_of(v(vZero, 4)) + [v(vT), v(vT + 1), s(sKVo), s(sKV1)])
            k.label("L_k1_noz")
        if t > 1 and t == zst:
            k.salu("s_cmp_lg_u32", s(sOld), 0)
            k.branch("s_cbranch_scc1", "L_k1_nof")
            k.valu("v_mov_b32", v(vT + 2), 1)
            k.raw("buffer_store_dword %s, %s, %s, %s offen sc0 sc1" % (v(vT + 2), v(vFlag), s(S_DBG, 4), s(sFlagOff)), 8, "vmem",
                  rd=[v(vT + 2), v(vFlag), s(sFlagOff)])
            k.label("L_k1_nof")
        if t == 7:
            assert nxt == 10
            sU, sCb, sO = 76, 77, 78
            vRt, vRa, vRs, R0 = 64, 65, 66, 72
            k.salu("s_lshl_b32", s(sU), "s2", 2)
            k.salu("s_add_u32", s(sU), s(sU), s(sLw))
            k.salu("s_mul_i32", s(sCb), s(sU), 911)
            k.salu("s_lshr_b32", s(sCb), s(sCb), 16)
            k.salu("s_mul_i32", s(sT0), s(sCb), 72)
            k.salu("s_sub_u32", s(sO), s(sU), s(sT0))
            k.salu("s_mul_i32", s(sO), s(sO), 3)
            srd(k, S_X, "s44", "s45", 2211840)
            k.salu("s_mul_i32", s(sT0), s(sO), 8 * 1280)
            k.salu("s_lshl_b32", s(sT1), s(sCb), 7)
            k.salu("s_add_u32", s(sT0), s(sT0), s(sT1))
            k.salu("s_cmp_ge_u32", s(sU), 720)
            k.salu("s_cselect_b32", s(sT0), OOB, s(sT0))
            k.valu("v_lshrrev_b32", v(vRt), 3, v(vLane))
            k.valu("v_mul_u32_u24", v(vRt), 1280, v(vRt))
            k.valu("v_and_b32", v(vRa), 7, v(vLane))
            k.valu("v_lshl_add_u32", v(vRt), v(vRa), 4, v(vRt))
            for o in range(3):
                k.salu("s_add_u32", "m0", s(sLA), 2 * SLOT + o * 1024)
                k.dma(v(vRt), s(S_X, 4), s(sT0), tag="rt")
                k.salu("s_add_u32", s(sT0), s(sT0), 8 * 1280)
            k.valu("v_bfe_u32", v(vRa), v(vLane), 2, 2)
            k.valu("v_lshlrev_b32", v(vRa), 7, v(vRa))
            k.valu("v_lshl_add_u32", v(vRa), v(vG), 5, v(vRa))
            k.valu("v_and_b32", v(vT + 3), 3, v(vLane))
            k.valu("v_lshl_add_u32", v(vRa), v(vT + 3), 3, v(vRa))
            k.salu("s_add_u32", s(sT0), s(sLA), 2 * SLOT)
            k.valu("v_add_u32", v(vRa), s(sT0), v(vRa))
            k.salu("s_lshl_b32", s(sT0), s(sCb), 6)
            k.valu("v_add_u32", v(vT + 3), s(sT0), v(vLane))
            k.valu("v_min_u32", v(vT + 3), 639, v(vT + 3))
            col_to_tile_slot(k, v(vT + 3), v(vRs), v(vT + 4), v(vT + 5), v(vT + 6), v(vT + 8))
            k.valu("v_lshlrev_b32", v(vRs), 10, v(vRs))
            k.valu("v_lshl_add_u32", v(vRs), v(vT + 4), 4, v(vRs))
        n_iss = 2 if (nxt < t + 3 and t >= cfg.get("k1_catch", 0)) else 1
        for _ in range(n_iss):
            if nxt < 10 and nxt <= t + 3:
                issue_a(nxt)
                issue_b(nxt)
                nxt += 1
    k.wait_tag(vm="rt")
    for o in range(3):
        for u in range(2):
            k.ds_read("ds_read_b64_tr_b16", v(R0 + 4 * o + 2 * u, 2), v(vRa), o * 1024 + u * 512, tag=("rr", o))
    for o in range(3):
        k.salu("s_add_u32", s(sT0), s(sO), o)
        k.salu("s_lshr_b32", s(sT1), s(sT0), 2)
        k.salu("s_mul_i32", s(sT1), s(sT1), 40960)
        k.salu("s_and_b32", s(sT0), s(sT0), 3)
        k.salu("s_lshl_b32", s(sT0), s(sT0), 8)
        k.salu("s_add_u32", s(sT1), s(sT1), s(sT0))
        k.salu("s_add_u32", s(sT1), s(sT1), WS_WDF)
        k.salu("s_cmp_ge_u32", s(sU), 720)
        k.salu("s_cselect_b32", s(sT1), OOB, s(sT1))
        k.wait_tag(lg=("rr", o))
        k.bstore("buffer_store_dwordx4", v(R0 + 4 * o, 4), v(vRs), s(S_WS, 4), s(sT1), flags=cfg.get("rt_st", "sc1"), tag="rs")
    k.branch("s_branch", "L_k1_fin")

    k.label("L_k1_comp")
    k.vm, k.lg = [], []
    k.salu("s_lshl_b32", s(sT0), s(sJJ), 2)
    k.salu("s_add_u32", s(sT0), s(sT0), s(sWave))
    k.salu("s_and_b32", s(sT0), s(sT0), 31)
    k.salu("s_mul_i32", s(sT0), s(sT0), 640)
    k.valu("v_lshlrev_b32", v(vT), 4, v(vLane))
    k.bload("buffer_load_dwordx4", v(ACC, 4), v(vT), s(S_CODE, 4), s(sT0), tag="pre")
    k.salu("s_lshr_b32", s(sWm), s(sWave), 1)
    k.salu("s_and_b32", s(sWn), s(sWave), 1)
    k.valu("v_lshrrev_b32", v(vT), 1, v(vS))
    k.valu("v_xor_b32", v(vT), v(vT), v(vG))
    k.valu("v_lshlrev_b32", v(vT), 4, v(vT))
    k.valu("v_lshl_add_u32", v(vT), v(vS), 7, v(vT))
    k.valu("v_xor_b32", v(vT + 1), 64, v(vT))
    k.salu("s_lshl_b32", s(sT0), s(sWm), 13)
    k.salu("s_lshl_b32", s(sT1), s(sWn), 12)
    k.salu("s_add_u32", s(sT2), s(sT0), s(sT1))
    k.salu("s_xor_b32", s(sT1), s(sT1), 4096)
    k.salu("s_add_u32", s(sT0), s(sT0), s(sT1))
    k.valu("v_add_u32", v(vX + 0), s(sT2), v(vT))
    k.valu("v_add_u32", v(vX + 1), s(sT0), v(vT))
    k.valu("v_add_u32", v(vX + 2), s(sT2), v(vT + 1))
    k.valu("v_add_u32", v(vX + 3), s(sT0), v(vT + 1))
    k.valu("v_bfe_u32", v(vT), v(vLane), 2, 2)
    k.valu("v_lshlrev_b32", v(vT), 1, v(vT))
    k.valu("v_lshl_add_u32", v(vT), v(vG), 3, v(vT))
    k.valu("v_mul_u32_u24", v(vT), 336, v(vT))
    k.valu("v_and_b32", v(vT + 1), 3, v(vLane))
    k.valu("v_lshl_add_u32", v(vT), v(vT + 1), 3, v(vT))
    k.salu("s_mul_i32", s(sT0), s(sWn), 160)
    k.salu("s_add_u32", s(sT0), s(sT0), BOFF)
    k.valu("v_add_u32", v(vWb + 2), s(sT0), v(vT))
    k.salu("s_lshl_b32", s(sT1), s(sWm), 6)
    k.valu("v_add_u32", v(vWb), s(sT1), v(vWb + 2))
    k.salu("s_xor_b32", s(sT1), s(sT1), 64)
    k.valu("v_add_u32", v(vWb + 1), s(sT1), v(vWb + 2))
    for i in range(4):
        k.valu("v_mov_b32", v(vOnes + i), ONES_BF16)
    k.salu("s_mov_b32", s(sC640), f32(1.0 / 640))
    k.valu("v_mov_b32", v(vE), f32(EPS6))
    k.valu("v_mov_b32", v(vE + 1), f32(-EPS6 * LOG2E))
    k.valu("v_mov_b32", v(vL), f32(LOG2E))
    k.valu("v_mov_b32", v(vL + 1), 0)
    STAT, CSX = SCR, SCR + 1024
    k.salu("s_lshl_b32", s(sT0), s(sWm), 9)
    k.salu("s_lshl_b32", s(sT1), s(sWn), 8)
    k.salu("s_add_u32", s(sT2), s(sT0), s(sT1))
    k.salu("s_xor_b32", s(sT1), s(sT1), 256)
    k.salu("s_add_u32", s(sT0), s(sT0), s(sT1))
    k.salu("s_add_u32", s(sT2), s(sT2), STAT)
    k.salu("s_add_u32", s(sT0), s(sT0), STAT)
    k.valu("v_lshlrev_b32", v(vT), 3, v(vS))
    k.valu("v_add_u32", v(vStW), s(sT2), v(vT))
    k.valu("v_add_u32", v(vStR), s(sT0), v(vT))
    k.salu("s_lshl_b32", s(sT0), s(sWn), 8)
    k.salu("s_add_u32", s(sT0), s(sT0), CSX)
    k.salu("s_lshl_b32", s(sT1), s(sWm), 7)
    k.salu("s_add_u32", s(sT2), s(sT0), s(sT1))
    k.salu("s_xor_b32", s(sT1), s(sT1), 128)
    k.salu("s_add_u32", s(sT0), s(sT0), s(sT1))
    k.valu("v_lshlrev_b32", v(vT), 4, v(vG))
    k.valu("v_add_u32", v(vCsW), s(sT2), v(vT))
    k.valu("v_add_u32", v(vCsR), s(sT0), v(vT))
    k.valu("v_and_b32", v(vT), 3, v(vS))
    k.valu("v_lshrrev_b32", v(vT + 1), 2, v(vS))
    k.valu("v_cmp_eq_u32", s(sMask, 2), 1, v(vT))
    k.valu("v_cmp_eq_u32", s(sMask + 2, 2), 2, v(vT))
    k.valu("v_cmp_eq_u32", s(sMask + 4, 2), 3, v(vT))
    k.valu("v_cmp_eq_u32", s(sMask + 6, 2), v(vT + 1), v(vG))
    k.valu("v_cmp_gt_u32", s(sMask + 8, 2), 2, v(vG))
    k.wait(lg=0)
    srd(k, S_DBG, "s48", "s49", 256)
    srd(k, S_WS, "s50", "s51", WS_SIZE)
    k.salu("s_cmp_eq_u32", s(sRole), 1)
    k.branch("s_cbranch_scc1", "L_k1_setq")
    k.valu("v_mul_u32_u24", v(vT), KVP, v(vS))
    k.salu("s_mul_i32", s(sT0), s(sWm), 64 * KVP)
    k.salu("s_mul_i32", s(sT1), s(sWn), KVT + 32 * KVP)
    k.salu("s_add_u32", s(sT2), s(sT0), s(sT1))
    k.salu("s_mul_i32", s(sT1), s(sWn), KVT - 32 * KVP)
    k.salu("s_add_u32", s(sT0), s(sT0), s(sT1))
    k.salu("s_add_u32", s(sT0), s(sT0), 32 * KVP)
    k.valu("v_add_u32", v(vKA + 2), s(sT2), v(vT))
    k.valu("v_add_u32", v(vKA + 3), s(sT0), v(vT))
    k.valu("v_lshl_add_u32", v(vKA), v(vG), 3, v(vKA + 2))
    k.valu("v_lshl_add_u32", v(vKA + 1), v(vG), 3, v(vKA + 3))

    def enc(qs):
        return qs[0] | qs[1] << 8 | qs[2] << 16 | qs[3] << 24
    A1h0, A1h1, A2 = enc([10, 11, 12, 13]), enc([15, 16, 17, 18]), enc([14, 19, 20, 20])
    B1h0, B1h1, B2 = enc([0, 1, 2, 3]), enc([5, 6, 7, 8]), enc([4, 9, 4, 9])
    k.salu("s_and_b32", s(sT2), s(sWave), 3)
    k.salu("s_mov_b32", s(sAq), A2)
    k.salu("s_mov_b32", s(sBq0), B2)
    k.salu("s_mov_b32", s(sBq1), B2)
    k.salu("s_cmp_eq_u32", s(sT2), 0)
    k.salu("s_cselect_b32", s(sAq), A1h0, s(sAq))
    k.salu("s_cselect_b32", s(sBq0), B1h0, s(sBq0))
    k.salu("s_cmp_eq_u32", s(sT2), 1)
    k.salu("s_cselect_b32", s(sAq), A1h1, s(sAq))
    k.salu("s_cselect_b32", s(sBq0), B1h1, s(sBq0))
    k.salu("s_cmp_eq_u32", s(sT2), 2)
    k.salu("s_cselect_b32", s(sBq0), B1h0, s(sBq0))
    k.salu("s_cselect_b32", s(sBq1), B1h1, s(sBq1))
    vK = vT
    k.valu("v_and_b32", v(vK), 1, v(vG))
    k.valu("v_bfe_u32", v(vK + 1), v(vLane), 2, 2)
    k.valu("v_lshl_add_u32", v(vK), v(vK), 2, v(vK + 1))
    k.valu("v_lshrrev_b32", v(vK + 1), 1, v(vG))
    k.valu("v_lshl_add_u32", v(vK), v(vK), 2, v(vK + 1))
    k.valu("v_mul_u32_u24", v(vK), KVP, v(vK))
    k.valu("v_and_b32", v(vK + 1), 3, v(vLane))
    k.valu("v_lshlrev_b32", v(vK + 1), 3, v(vK + 1))
    for dst, tb in ((vAa, sAq), (vB0a, sBq0), (vB1a, sBq1)):
        k.valu("v_bfe_u32", v(dst), s(tb), v(vK + 1), 8)
        k.valu("v_lshl_add_u32", v(dst), v(dst), 3, v(vK))
    k.salu("s_mul_i32", s(sKVo), s(sCg), 6720)
    k.salu("s_add_u32", s(sKVo), s(sKVo), WS_KV)
    k.salu("s_cmp_eq_u32", s(sT2), 3)
    k.salu("s_cselect_b32", s(sKV1), OOB, s(sKVo))
    k.valu("v_lshlrev_b32", v(vK + 7), 3, v(vG))
    k.valu("v_bfe_u32", v(vK + 7), s(sAq), v(vK + 7), 8)
    k.valu("v_subrev_u32", v(vK + 7), 10, v(vK + 7))
    k.valu("v_lshrrev_b32", v(vK + 8), 2, v(vS))
    k.valu("v_lshlrev_b32", v(vK + 8), 3, v(vK + 8))
    sE = 92
    for dst, tb in ((vO0, sBq0), (vO1, sBq1)):
        k.valu("v_bfe_u32", v(vK + 9), s(tb), v(vK + 8), 8)
        k.valu("v_cmp_le_u32", "vcc", 5, v(vK + 9))
        k.valu("v_cndmask_b32", v(vK + 10), 0, 1, "vcc")
        k.valu("v_mul_u32_u24", v(vK + 11), 5, v(vK + 10))
        k.valu("v_sub_u32", v(vK + 9), v(vK + 9), v(vK + 11))
        k.valu("v_sub_u32", v(vK + 11), v(vK + 7), v(vK + 11))
        k.valu("v_cmp_eq_u32", "vcc", 10, v(vK + 7))
        k.valu("v_cndmask_b32", v(vK + 11), v(vK + 11), 5, "vcc")
        k.valu("v_cmp_eq_u32", s(sE, 2), 5, v(vK + 7))
        k.valu("v_cmp_eq_u32", "vcc", 0, v(vK + 10))
        k.salu("s_and_b64", s(sE, 2), s(sE, 2), "vcc")
        k.valu("v_cndmask_b32", v(vK + 11), v(vK + 11), 63, s(sE, 2))
        k.valu("v_mul_u32_u24", v(dst), 21, v(vK + 10))
        k.valu("v_lshl_add_u32", v(dst), v(vK + 11), 2, v(dst))
        k.valu("v_mul_u32_u24", v(dst), 20, v(dst))
        k.valu("v_lshl_add_u32", v(dst), v(vK + 9), 2, v(dst))
        k.valu("v_and_b32", v(vK + 12), 3, v(vS))
        k.valu("v_add_lshl_u32", v(dst), v(dst), v(vK + 12), 2)
        k.valu("v_mov_b32", v(vK + 12), OOB)
        k.valu("v_cmp_lt_u32", "vcc", 5, v(vK + 11))
        k.valu("v_cndmask_b32", v(dst), v(dst), v(vK + 12), "vcc")
        k.salu("s_cmp_eq_u32", s(tb), B2)
        k.salu("s_cselect_b32", s(sT0), 8, 16)
        k.valu("v_cmp_le_u32", "vcc", s(sT0), v(vS))
        k.valu("v_cndmask_b32", v(dst), v(dst), v(vK + 12), "vcc")
        k.salu("s_cmp_eq_u32", s(sAq), A2)
        k.salu("s_cselect_b32", s(sT0), 3, 4)
        k.valu("v_cmp_le_u32", "vcc", s(sT0), v(vG))
        k.valu("v_cndmask_b32", v(dst), v(dst), v(vK + 12), "vcc")
    k.salu("s_cmp_eq_u32", s(sT2), 3)
    k.salu("s_cselect_b32", s(sT0), OOB, 0)
    k.valu("v_add_u32", v(vO1), s(sT0), v(vO1))
    for r_ in (vO0, vO1):
        k.valu("v_cmp_gt_u32", "vcc", 4000, v(r_))
        k.valu("v_add_u32", v(r_), KVL, v(r_))
        k.valu("v_lshlrev_b32", v(vT), 2, v(vLane))
        k.valu("v_add_u32", v(vT), KVL - 4096, v(vT))
        k.valu("v_cndmask_b32", v(r_), v(vT), v(r_), "vcc")
        k.valu("v_cmp_eq_u32", "vcc", 10, v(vK + 7))
        k.valu("v_cndmask_b32", v(r_ + 219), v(r_), v(vT), "vcc")
    k.salu("s_mul_i32", s(sT0), s(sWave), 7 * 256)
    k.valu("v_lshlrev_b32", v(vPk), 2, v(vLane))
    k.valu("v_add_u32", v(vPk), s(sT0), v(vPk))
    k.valu("v_add_u32", v(vPk + 1), KVL, v(vPk))
    k.branch("s_branch", "L_k1_main")
    k.label("L_k1_setq")
    k.valu("v_mov_b32", v(vPk), 0)
    k.valu("v_mov_b32", v(vPk + 1), 0)
    k.salu("s_mul_i32", s(sT0), s(sCg), 160)
    k.salu("s_mul_i32", s(sT1), s(sWn), 80)
    k.salu("s_add_u32", s(sT0), s(sT0), s(sT1))
    for b in range(5):
        k.valu("v_lshlrev_b32", v(vT), 2, v(vG))
        k.valu("v_add_u32", v(vT), s(sT0), v(vT))
        if b < 4:
            k.salu("s_lshl_b32", s(sT1), s(sWm), 5)
            k.salu("s_xor_b32", s(sT1), s(sT1), 16 * b)
            k.valu("v_add_u32", v(vT), s(sT1), v(vT))
        else:
            k.valu("v_add_u32", v(vT), 64, v(vT))
        k.valu("v_lshrrev_b32", v(vT + 1), 5, v(vT))
        k.valu("v_lshlrev_b32", v(vT + 1), 17, v(vT + 1))
        k.valu("v_bfe_u32", v(vT + 2), v(vT), 3, 2)
        k.valu("v_lshl_add_u32", v(vT + 2), v(vT + 2), 4, v(vS))
        k.valu("v_lshl_add_u32", v(vT + 1), v(vT + 2), 4, v(vT + 1))
        k.valu("v_bfe_u32", v(vT + 2), v(vT), 2, 1)
        k.valu("v_lshl_add_u32", v(vQ + b), v(vT + 2), 3, v(vT + 1))
    k.salu("s_lshl_b32", s(sT0), s(sRb), 3)
    k.salu("s_lshl_b32", s(sT1), s(sWm), 2)
    k.salu("s_add_u32", s(sT0), s(sT0), s(sT1))
    k.salu("s_lshl_b32", s(sT1), s(sWn), 1)
    k.salu("s_add_u32", s(sQ0), s(sT0), s(sT1))
    k.salu("s_lshl_b32", s(sQ0), s(sQ0), 10)
    k.salu("s_xor_b32", s(sQ1), s(sQ0), 2048)
    for i in range(4):
        k.valu("v_mov_b32", v(vKA + i), 0)
    k.label("L_k1_main")

    def frag_reads(kap):
        t, u2 = kap >> 1, kap & 1
        buf = kap & 1
        ops = []
        d = SLOT if t % NSLOT else -(NSLOT - 1) * SLOT
        if u2 == 0 and t > 0:
            for r in (vX, vWb, vX + 1, vWb + 1, vWb + 2):
                ops.append(lambda r=r, d=d: k.valu("v_add_u32", v(r), d & 0xFFFFFFFF, v(r)))
        if u2 == 1 and t > 0:
            for r in (vX + 2, vX + 3):
                ops.append(lambda r=r, d=d: k.valu("v_add_u32", v(r), d & 0xFFFFFFFF, v(r)))

        def xr(ap):
            return lambda: k.ds_read("ds_read_b128", v(XF + buf * 16 + ap * 4, 4), v(vX + 2 * u2 + (ap >> 1)), (ap & 1) * 2048, tag=("fr", kap))

        def wr_(b, u):
            return lambda: k.ds_read("ds_read_b64_tr_b16", v(WF + buf * 20 + b * 4 + u * 2, 2), v(vWb + (b >> 1)),
                                     336 * (32 * u2 + u) + (32 * (b & 1) if b < 4 else 128), tag=("fr", kap))
        ops += [xr(0), wr_(0, 0), wr_(0, 1), xr(1), xr(2), xr(3)]
        for b in range(1, 5):
            ops += [wr_(b, 0), wr_(b, 1)]
        return ops

    k.stamp(1)
    k.wait(vm=0)
    k.barrier()
    k.stamp(2)
    for f in frag_reads(0):
        f()
    for kap in range(20):
        t, u2 = kap >> 1, kap & 1
        buf = kap & 1
        k.wait_tag(lg=("fr", kap))
        if u2 == 1 and t + 1 < 10:
            k.barrier()
        if kap in (4, 8, 12, 16):
            k.stamp(2 + kap // 4)
        if kap == 18:
            k.bload("buffer_load_dword", v(vOld), v(vFlag), s(S_DBG, 4), s(sFlagOff), flags="sc0 sc1", tag="poll")
        fill = frag_reads(kap + 1) if kap + 1 < 20 else []
        xs = [v(XF + buf * 16 + 4 * ap, 4) for ap in range(4)]
        mf = []
        for b in range(5):
            w = v(WF + buf * 20 + b * 4, 4)
            for ap in range(4):
                mf.append((v(acc(ap, b), 4), w, xs[ap]))
            if b in (0, 1, 4):
                mf.append((v(CS[b], 4), w, v(vOnes, 4)))
            if b >= 1:
                i = b - 1
                mf.append((v(RS + 4 * i, 4), v(vOnes, 4) if i < 2 else xs[i & 1], xs[i & 1]))
        fi = 0
        for i, (d, A, B) in enumerate(mf):
            k.mfma("16x16x32", d, A, B, 0 if kap == 0 else d)
            for _ in range(1 if i else 2):
                if fi < len(fill):
                    fill[fi]()
                    fi += 1
        while fi < len(fill):
            fill[fi]()
            fi += 1

    k.stamp(7)
    vW = XF
    for b in range(2):
        k.ds_write("ds_write_b128", v(vCsW), v(CS[b], 4), 64 * b, tag="csw")
    for ap in range(2):
        g0 = RS + 8 + 4 * ap
        q_ = v(vW + ap)
        k.valu("v_cndmask_b32", q_, v(g0), v(g0 + 1), s(sMask, 2))
        k.valu("v_cndmask_b32", q_, q_, v(g0 + 2), s(sMask + 2, 2))
        k.valu("v_cndmask_b32", q_, q_, v(g0 + 3), s(sMask + 4, 2))
        k.valu("v_cndmask_b32", q_, 0, q_, s(sMask + 6, 2))
    xsum_g2(k, v(vW), v(vW + 2), v(vW + 1), v(vW + 3))
    k2a, k2b = K("t"), K("t")
    ln_stats(k2a, v(RS), v(vW), v(vM[0]), v(vM[0] + 1), v(vW + 2), s(sC640))
    ln_stats(k2b, v(RS + 4), v(vW + 1), v(vM[1]), v(vM[1] + 1), v(vW + 3), s(sC640))
    for x_, y_ in zip(k2a.ins, k2b.ins):
        k.ins += [x_, y_]
    for ap in range(2):
        k.valu("v_mul_f32", v(vM[ap]), v(vM[ap]), v(vM[ap] + 1))
    for ap in range(2):
        k.valu("v_sub_f32", v(vM[ap]), 0, v(vM[ap]))
        k.ds_write("ds_write_b64", v(vStW), v(vM[ap], 2), 128 * ap, tag="stw")
    k.wait_tag(vm="poll")
    k.valu("v_readfirstlane_b32", s(sOld), v(vOld))
    k.wait(lg=0)
    k.barrier()
    for ap in range(2):
        k.ds_read("ds_read_b64", v(vM[2 + ap], 2), v(vStR), 128 * ap, tag="str")
        k.ds_read("ds_read_b128", v(CS[2 + ap], 4), v(vCsR), 64 * ap, tag="str")

    def pk(op, d, srcs, sel):
        lo = ",".join("1" if c == "h" else "0" for c in sel)
        hi = ",".join("0" if c == "l" else "1" for c in sel)
        k.valu(op, d, *srcs, mods="op_sel:[%s] op_sel_hi:[%s]" % (lo, hi))

    def elem_tile(ap, b, mode, w):
        A = acc(ap, b)
        C = CS[b]
        c0, t0, u0, o0 = w, w + 4, w + 8, w + 12
        for h in range(2):
            if mode == "id":
                pk("v_pk_mul_f32", v(c0 + 2 * h, 2), (v(vM[ap], 2), v(C + 2 * h, 2)), "lp")
            else:
                pk("v_pk_fma_f32", v(c0 + 2 * h, 2), (v(vM[ap], 2), v(C + 2 * h, 2), v(vE, 2)), "lpl")
        for h in range(2):
            pk("v_pk_fma_f32", v(t0 + 2 * h, 2), (v(A + 2 * h, 2), v(vM[ap], 2), v(c0 + 2 * h, 2)), "php")
        if mode != "id":
            for h in range(2):
                pk("v_pk_fma_f32", v(u0 + 2 * h, 2), (v(t0 + 2 * h, 2), v(vL, 2), v(vE, 2)), "plh")
            for r in range(4):
                k.valu("v_exp_f32", v(u0 + r), v(u0 + r), mods="clamp")
                k.valu("v_max_f32", v(c0 + r), v(vE), v(t0 + r))
            for h in range(2):
                k.valu("v_pk_add_f32", v(c0 + 2 * h, 2), v(c0 + 2 * h, 2), v(u0 + 2 * h, 2))
            if mode == "mix":
                for r in range(4):
                    k.valu("v_sub_f32", v(t0 + r), v(t0 + r), v(vE))
                    k.valu("v_cndmask_b32", v(c0 + r), v(t0 + r), v(c0 + r), s(sMask + 8, 2))
            src = c0
        else:
            src = t0
        k.valu("v_cvt_pk_bf16_f32", v(o0), v(src), v(src + 1))
        k.valu("v_cvt_pk_bf16_f32", v(o0 + 1), v(src + 2), v(src + 3))
        return o0

    k.salu("s_cmp_eq_u32", s(sRole), 1)
    k.branch("s_cbranch_scc1", "L_k1_epiq")
    k.valu("v_mov_b32", v(RS), 0x3F80)
    k.valu("v_mov_b32", v(RS + 1), 0)
    for ap in range(4):
        k.ds_write("ds_write_b64", v(vKA + 2 + (ap >> 1)), v(RS, 2), (ap & 1) * 16 * KVP + 160, tag="kvw")
    order = [(ap, b) for ap in range(2) for b in (0, 1, 4)] + [(ap, b) for ap in range(4) for b in range(5) if not (ap < 2 and b in (0, 1, 4))]
    modes = ["phi", "phi", "mix", "id", "id"]
    k.salu("s_cmp_eq_u32", s(sWm), 1)
    k.branch("s_cbranch_scc1", "L_k1_epi_wm1")
    lg_save = list(k.lg)
    for wm in range(2):
        if wm == 1:
            k.branch("s_branch", "L_k1_epi_j")
            k.label("L_k1_epi_wm1")
            k.lg = list(lg_save)
        for i, (ap, b) in enumerate(order):
            if i == 6:
                k.wait_tag(lg="str")
            ab = (b ^ (2 * wm)) if b < 4 else 4
            o = elem_tile(ap, b, modes[ab], vW + 16 * (i % 4))
            k.ds_write("ds_write_b64", v(vKA + (ap >> 1)), v(o, 2), (ap & 1) * 16 * KVP + 32 * ab, tag="kvw")
    k.label("L_k1_epi_j")
    k.stamp(8)
    k.wait(lg=0)
    k.barrier()
    FA, FB0, FB1, D0, D1 = ACC, ACC + 16, ACC + 32, ACC + 96, ACC + 100
    jobs = [(hp, ks) for hp in range(2) for ks in range(4)]
    for n in range(9):
        if n < 8:
            hp, ks = jobs[n]
            for u in range(2):
                off = hp * KVT + (32 * ks + 2 * u) * KVP
                for F, A_ in ((FA, vAa), (FB0, vB0a), (FB1, vB1a)):
                    k.ds_read("ds_read_b64_tr_b16", v(F + hp * 48 + ks * 4 + 2 * u, 2), v(A_), off, tag=("kv", n))
        if n >= 1:
            hp, kk = jobs[n - 1]
            k.wait_tag(lg=("kv", n - 1))
            for D, F in ((D0, FB0), (D1, FB1)):
                k.mfma("16x16x32", v(D + 8 * hp, 4), v(FA + hp * 48 + kk * 4, 4), v(F + hp * 48 + kk * 4, 4), 0 if kk == 0 else v(D + 8 * hp, 4))
    for hp in range(2):
        for r in range(4):
            for D, O_ in ((D0, vO0), (D1, vO1)):
                k.ds_write("ds_write_b32", v(O_ if r == 0 else O_ + 219), v(D + 8 * hp + r), 3360 * hp + 80 * r, tag="kva")
    k.wait(lg=0)
    k.barrier()
    for n in range(7):
        k.ds_read("ds_read_b32", v(ACC + n), v(vPk + 1), 256 * n, tag=("kr", n))
    srd_off(k, S_X, "s50", "s51", 0, 0)
    k.salu("s_add_u32", s(S_X), s(S_X), s(sKVo))
    k.salu("s_addc_u32", s(S_X + 1), s(S_X + 1), 0)
    k.salu("s_mov_b32", s(S_X + 2), 6720)
    k.stamp(9)
    k.label("L_k1_poll")
    k.salu("s_cmp_lg_u32", s(sOld), 0)
    k.branch("s_cbranch_scc1", "L_k1_go")
    k.raw("s_sleep 2", 4, "other")
    k.bload("buffer_load_dword", v(vOld), v(vFlag), s(S_DBG, 4), s(sFlagOff), flags="sc0 sc1", tag="poll")
    k.wait(vm=0)
    k.valu("v_readfirstlane_b32", s(sOld), v(vOld))
    k.nop(3)
    k.branch("s_branch", "L_k1_poll")
    k.label("L_k1_go")
    k.nop(7)
    k.lg = [("kr", n) for n in range(7)]
    for n in range(7):
        k.wait_tag(lg=("kr", n))
        k.bstore("buffer_atomic_add_f32", v(ACC + n), v(vPk), s(S_X, 4), 0, offset=256 * n, tag="kvat")
    k.branch("s_branch", "L_k1_fin")
    k.label("L_k1_epiq")
    k.lg = ["str"] * 4
    for i, (ap, b) in enumerate(order):
        if i == 6:
            k.wait_tag(lg="str")
        o = elem_tile(ap, b, "phi", vW + 16 * (i % 4))
        k.bstore("buffer_store_dwordx2", v(o, 2), v(vQ + b), s(S_WS, 4), s(sQ0 if ap < 2 else sQ1), offset=(ap & 1) * 1024, tag="pq")
    k.branch("s_branch", "L_k1_fin")

    k.label("L_k1_rt")
    k.vm, k.lg = [], []
    vT = 120
    vZero = 12
    sR, sW8, sLd, sN, sStg, sI, sSt_, sSub = range(66, 74)
    sJ = [dict(St=76, Cb=77, Job=78, O=79, Stg=80), dict(St=81, Cb=82, Job=83, O=84, Stg=85)]
    sKind = 86
    vRt, vCs, vOne, vL16 = 4, 7, 8, 9
    vRa, vRs = [16, 17], [18, 19]
    vPf = 20
    R0 = 40
    k.salu("s_sub_u32", s(sR), s(sJJ), 24)
    k.salu("s_lshl_b32", s(sI), s(sR), 3)
    k.salu("s_add_u32", s(sI), s(sI), s(sWave))
    k.salu("s_lshl_b32", s(sR), s(sR), 3)
    k.salu("s_add_u32", s(sR), s(sR), s(sXcd))
    k.salu("s_lshl_b32", s(sW8), s(sR), 3)
    k.salu("s_add_u32", s(sW8), s(sW8), s(sWave))
    k.valu("v_lshlrev_b32", v(vL16), 4, v(vLane))
    k.valu("v_mul_u32_u24", v(vT + 8), 1280, v(vLane))
    k.wait(lg=0)
    srd(k, S_X, "s32", "s33", 2621440)
    srd(k, S_W, "s34", "s35", 2457600)
    srd(k, S_WS, "s50", "s51", WS_SIZE)
    k.salu("s_mov_b32", s(sN), 0)
    k.label("L_k1_pf")
    k.salu("s_mul_i32", s(sSt_), s(sI), 2850)
    k.salu("s_lshr_b32", s(sSt_), s(sSt_), 16)
    for u in range(256):
        assert (u * 2850) >> 16 == u // 23
    k.salu("s_mul_i32", s(sT0), s(sSt_), 23)
    k.salu("s_sub_u32", s(sSub), s(sI), s(sT0))
    k.salu("s_cmp_ge_u32", s(sSub), 8)
    k.branch("s_cbranch_scc1", "L_k1_pfw")
    k.salu("s_lshr_b32", s(sT0), s(sXcd), 1)
    k.salu("s_lshl_b32", s(sT0), s(sT0), 3)
    k.salu("s_add_u32", s(sT0), s(sT0), s(sSub))
    k.salu("s_mul_i32", s(sT0), s(sT0), 64 * 1280)
    k.salu("s_lshl_b32", s(sT1), s(sSt_), 7)
    k.salu("s_add_u32", s(sT0), s(sT0), s(sT1))
    k.salu("s_cmp_ge_u32", s(sSt_), 10)
    k.salu("s_cselect_b32", s(sT0), OOB, s(sT0))
    k.bload("buffer_load_dword", v(vPf), v(vT + 8), s(S_X, 4), s(sT0), tag="pf")
    k.branch("s_branch", "L_k1_pfn")
    k.label("L_k1_pfw")
    k.salu("s_sub_u32", s(sT0), s(sSub), 8)
    k.salu("s_lshl_b32", s(sT0), s(sT0), 6)
    k.valu("v_add_u32", v(vT), s(sT0), v(vLane))
    divmagic(k, v(vT + 1), v(vT), 15, None, 1023)
    k.valu("v_mul_u32_u24", v(vT + 2), 15, v(vT + 1))
    k.valu("v_sub_u32", v(vT + 2), v(vT), v(vT + 2))
    divmagic(k, v(vT + 3), v(vT + 2), 5, None, 15)
    k.valu("v_mul_u32_u24", v(vT + 1), 3840, v(vT + 1))
    k.valu("v_mul_u32_u24", v(vT + 3), 640, v(vT + 3))
    k.valu("v_lshl_add_u32", v(vT + 1), v(vT + 2), 7, v(vT + 1))
    k.valu("v_add_u32", v(vT + 1), v(vT + 1), v(vT + 3))
    k.salu("s_mul_i32", s(sT0), s(sSt_), 64 * 3840)
    k.salu("s_and_b32", s(sT1), s(sXcd), 1)
    k.salu("s_mul_i32", s(sT1), s(sT1), 640)
    k.salu("s_add_u32", s(sT0), s(sT0), s(sT1))
    k.bload("buffer_load_dword", v(vPf + 1), v(vT + 1), s(S_W, 4), s(sT0), tag="pf")
    k.label("L_k1_pfn")
    k.salu("s_add_u32", s(sI), s(sI), 64)
    k.salu("s_add_u32", s(sN), s(sN), 1)
    k.salu("s_cmp_lt_u32", s(sN), cfg.get("k1_pfn", 4))
    k.branch("s_cbranch_scc1", "L_k1_pf")
    k.salu("s_mul_i32", s(sJ[0]["Stg"]), s(sWave), 19456)
    k.salu("s_add_u32", s(sJ[1]["Stg"]), s(sJ[0]["Stg"]), 10240)
    k.valu("v_mov_b32", v(vOne), ONES_BF16)
    for i in range(4):
        k.valu("v_mov_b32", v(vZero + i), 0)
    k.valu("v_bfe_u32", v(vT), v(vLane), 2, 2)
    k.valu("v_lshlrev_b32", v(vT), 7, v(vT))
    k.valu("v_lshl_add_u32", v(vT), v(vG), 5, v(vT))
    k.valu("v_lshrrev_b32", v(vT + 1), 3, v(vLane))
    k.valu("v_and_b32", v(vT + 2), 7, v(vLane))
    k.valu("v_lshlrev_b32", v(vT + 2), 4, v(vT + 2))

    def issue(J, n, ld_step):
        for i in range(n):
            k.salu("s_add_u32", "m0", s(J["Stg"]), i * 1024)
            k.salu("s_add_u32", s(sT0), s(sLd), i * ld_step)
            k.dma(v(vRt), s(S_A, 4), s(sT0), tag="rt")

    def finish(j, n, st_offs, colsum):
        for i in range(n + 1):
            if i < n:
                for u in range(2):
                    k.ds_read("ds_read_b64_tr_b16", v(R0 + 40 * j + 4 * i + 2 * u, 2), v(vRa[j]), i * 1024 + u * 512, tag=("rr", j, i))
            if i >= 1:
                k.wait_tag(lg=("rr", j, i - 1))
                st_offs(i - 1)
                k.bstore("buffer_store_dwordx4", v(R0 + 40 * j + 4 * (i - 1), 4), v(vRs[j]), s(S_WS, 4), s(sT1), flags=cfg.get("rt_st", "sc1"), tag="rs")
                if colsum:
                    for q in range(4):
                        k.valu("v_dot2c_f32_bf16", v(vCs), v(R0 + 40 * j + 4 * (i - 1) + q), v(vOne))

    def nat_addrs(j):
        J = sJ[j]
        k.valu("v_and_b32", v(vT + 3), 3, v(vLane))
        k.valu("v_lshl_add_u32", v(vRa[j]), v(vT + 3), 3, v(vT))
        k.valu("v_add_u32", v(vRa[j]), s(J["Stg"]), v(vRa[j]))
        k.salu("s_lshl_b32", s(sT0), s(J["Cb"]), 6)
        k.valu("v_add_u32", v(vT + 3), s(sT0), v(vLane))
        col_to_tile_slot(k, v(vT + 3), v(vRs[j]), v(vT + 4), v(vT + 5), v(vT + 6), v(vT + 7))
        k.valu("v_lshlrev_b32", v(vRs[j]), 10, v(vRs[j]))
        k.valu("v_lshl_add_u32", v(vRs[j]), v(vT + 4), 4, v(vRs[j]))

    def issue_wd(j):
        J = sJ[j]
        srd(k, S_A, "s44", "s45", 2211840)
        k.salu("s_mul_i32", s(J["Cb"]), s(J["Job"]), 2731)
        k.salu("s_lshr_b32", s(J["Cb"]), s(J["Cb"]), 16)
        k.salu("s_mul_i32", s(sT0), s(J["Cb"]), 24)
        k.salu("s_sub_u32", s(J["O"]), s(J["Job"]), s(sT0))
        k.salu("s_mul_i32", s(J["O"]), s(J["O"]), 9)
        k.salu("s_mul_i32", s(sLd), s(J["O"]), 8 * 1280)
        k.salu("s_lshl_b32", s(sT0), s(J["Cb"]), 7)
        k.salu("s_add_u32", s(sLd), s(sLd), s(sT0))
        k.valu("v_mul_u32_u24", v(vRt), 1280, v(vT + 1))
        k.valu("v_add_u32", v(vRt), v(vRt), v(vT + 2))
        issue(J, 9, 8 * 1280)
        nat_addrs(j)

    def finish_wd(j):
        J = sJ[j]

        def off(i):
            k.salu("s_add_u32", s(sT0), s(J["O"]), i)
            k.salu("s_lshr_b32", s(sT1), s(sT0), 2)
            k.salu("s_mul_i32", s(sT1), s(sT1), 40960)
            k.salu("s_and_b32", s(sT0), s(sT0), 3)
            k.salu("s_lshl_b32", s(sT0), s(sT0), 8)
            k.salu("s_add_u32", s(sT1), s(sT1), s(sT0))
            k.salu("s_add_u32", s(sT1), s(sT1), WS_WDF)
        finish(j, 9, off, False)
    for u in range(240):
        assert (u * 2731) >> 16 == u // 24

    k.salu("s_cmp_ge_u32", s(sR), 54)
    k.branch("s_cbranch_scc1", "L_k1_rt_a_wd")
    J = sJ[0]
    k.salu("s_cmp_ge_u32", s(sR), 27)
    k.salu("s_cselect_b32", s(J["Job"]), 1, 0)
    k.salu("s_cselect_b32", s(S_A), "s42", "s40")
    k.salu("s_cselect_b32", s(S_A + 1), "s43", "s41")
    k.salu("s_mov_b32", s(S_A + 2), 2211840)
    k.salu("s_mov_b32", s(S_A + 3), 0x20000)
    k.salu("s_mul_i32", s(sT0), s(J["Job"]), 27)
    k.salu("s_sub_u32", s(J["Cb"]), s(sR), s(sT0))
    k.salu("s_mul_i32", s(sLd), s(sWave), 8 * 3456)
    k.salu("s_lshl_b32", s(sT0), s(J["Cb"]), 7)
    k.salu("s_add_u32", s(sLd), s(sLd), s(sT0))
    k.valu("v_mul_u32_u24", v(vRt), 3456, v(vT + 1))
    k.valu("v_add_u32", v(vRt), v(vRt), v(vT + 2))
    issue(J, 10, 64 * 3456)
    k.salu("s_mul_i32", s(J["St"]), s(J["Cb"]), 4 * 40960)
    k.salu("s_lshl_b32", s(sT0), s(J["Job"]), 8)
    k.salu("s_add_u32", s(J["St"]), s(J["St"]), s(sT0))
    k.salu("s_lshl_b32", s(sT0), s(sWave), 9)
    k.salu("s_add_u32", s(J["St"]), s(J["St"]), s(sT0))
    k.salu("s_add_u32", s(J["St"]), s(J["St"]), WS_WGUF)
    k.valu("v_and_b32", v(vT + 3), 1, v(vLane))
    k.valu("v_lshl_add_u32", v(vRa[0]), v(vT + 3), 4, v(vT))
    k.valu("v_bfe_u32", v(vT + 3), v(vLane), 1, 1)
    k.valu("v_lshl_add_u32", v(vRa[0]), v(vT + 3), 3, v(vRa[0]))
    k.valu("v_add_u32", v(vRa[0]), s(J["Stg"]), v(vRa[0]))
    k.valu("v_mul_u32_u24", v(vRs[0]), 40960, v(vG))
    k.valu("v_lshl_add_u32", v(vRs[0]), v(vS), 4, v(vRs[0]))
    k.valu("v_mov_b32", v(vCs), 0)
    k.salu("s_add_u32", s(sJ[1]["Job"]), s(sW8), 160)
    k.salu("s_mov_b32", s(sKind), 0)
    k.valu("v_mov_b32", v(vRa[1]), 0)
    k.valu("v_mov_b32", v(vRs[1]), 0)
    k.salu("s_cmp_ge_u32", s(sW8), 40)
    k.branch("s_cbranch_scc1", "L_k1_rt_go")
    k.branch("s_branch", "L_k1_rt_b_wo")
    def issue_wo(j):
        J = sJ[j]
        srd(k, S_A, "s36", "s37", 819200)
        k.salu("s_mul_i32", s(J["O"]), s(J["Job"]), 6554)
        k.salu("s_lshr_b32", s(J["O"]), s(J["O"]), 16)
        k.salu("s_mul_i32", s(sT0), s(J["O"]), 10)
        k.salu("s_sub_u32", s(J["Cb"]), s(J["Job"]), s(sT0))
        k.salu("s_mul_i32", s(sT0), s(J["O"]), 13108)
        k.salu("s_lshr_b32", s(sT0), s(sT0), 16)
        k.salu("s_mul_i32", s(sLd), s(sT0), 160 * 1280)
        k.salu("s_mul_i32", s(sT0), s(sT0), 5)
        k.salu("s_sub_u32", s(sT0), s(J["O"]), s(sT0))
        k.salu("s_lshl_b32", s(sT0), s(sT0), 3)
        k.valu("v_add_u32", v(vT + 3), s(sT0), v(vT + 1))
        divmagic(k, v(vT + 4), v(vT + 3), 5, None, 63)
        k.valu("v_mul_u32_u24", v(vT + 4), 15, v(vT + 4))
        k.valu("v_add_u32", v(vT + 3), v(vT + 3), v(vT + 4))
        k.valu("v_mul_u32_u24", v(vRt), 1280, v(vT + 3))
        k.valu("v_add_u32", v(vRt), v(vRt), v(vT + 2))
        k.salu("s_lshl_b32", s(sT0), s(J["Cb"]), 7)
        k.salu("s_add_u32", s(sLd), s(sLd), s(sT0))
        issue(J, 4, 5 * 1280)
        nat_addrs(j)
        k.salu("s_mul_i32", s(J["St"]), s(J["O"]), 40960)
        k.salu("s_add_u32", s(J["St"]), s(J["St"]), WS_WOF)

    k.label("L_k1_rt_a_wd")
    k.salu("s_sub_u32", s(sJ[0]["Job"]), s(sW8), 432)
    k.salu("s_lshl_b32", s(sJ[0]["Job"]), s(sJ[0]["Job"]), 1)
    k.salu("s_add_u32", s(sJ[1]["Job"]), s(sJ[0]["Job"]), 1)
    issue_wo(0)
    k.label("L_k1_rt_b_wo")
    k.salu("s_mov_b32", s(sKind), 2)
    issue_wo(1)
    k.label("L_k1_rt_go")
    k.salu("s_sub_u32", s(sT0), s(sJJ), 24)
    k.salu("s_lshl_b32", s(sT0), s(sT0), 3)
    k.salu("s_add_u32", s(sT0), s(sT0), s(sWave))
    k.salu("s_lshl_b32", s(sT0), s(sT0), 10)
    k.salu("s_add_u32", s(sT0), s(sT0), "(k2_kernel-k1_kernel)")
    k.bload("buffer_load_dwordx4", v(vPf + 4, 4), v(vL16), s(S_CODE, 4), s(sT0), tag="pre2")
    k.salu("s_lshl_b32", s(sT0), s(sW8), 10)
    k.salu("s_add_u32", s(sT1), s(sT0), WS_ST)
    k.salu("s_cmp_ge_u32", s(sW8), 16)
    k.salu("s_cselect_b32", s(sT1), OOB, s(sT1))
    k.bstore("buffer_store_dwordx4", v(vZero, 4), v(vL16), s(S_WS, 4), s(sT1), tag="z")
    k.wait(vm=2)
    k.stamp(1)
    k.salu("s_cmp_ge_u32", s(sR), 54)
    k.branch("s_cbranch_scc1", "L_k1_rt_fa_wd")
    finish(0, 10, lambda i: k.salu("s_add_u32", s(sT1), s(sJ[0]["St"]), i * 4096), True)
    CSR_ = 8 * 19456
    k.valu("v_lshlrev_b32", v(vT + 3), 2, v(vLane))
    k.salu("s_lshl_b32", s(sT0), s(sWave), 8)
    k.salu("s_add_u32", s(sT0), s(sT0), CSR_)
    k.valu("v_add_u32", v(vT + 4), s(sT0), v(vT + 3))
    k.ds_write("ds_write_b32", v(vT + 4), v(vCs), 0, tag="cw")
    k.wait(lg=0)
    k.barrier()
    k.valu("v_add_u32", v(vT + 4), CSR_, v(vT + 3))
    for i in range(8):
        k.ds_read("ds_read_b32", v(vT + 6 + i), v(vT + 4), 256 * i, tag="cr")
    k.wait(lg=0)
    for i in range(1, 8):
        k.valu("v_add_f32", v(vT + 6), v(vT + 6), v(vT + 6 + i))
    k.valu("v_lshlrev_b32", v(vT + 4), 7, v(vG))
    k.valu("v_lshl_add_u32", v(vT + 4), v(vS), 2, v(vT + 4))
    k.salu("s_lshl_b32", s(sT0), s(sJ[0]["Cb"]), 9)
    k.salu("s_lshl_b32", s(sT1), s(sJ[0]["Job"]), 6)
    k.salu("s_add_u32", s(sT0), s(sT0), s(sT1))
    k.salu("s_add_u32", s(sT0), s(sT0), WS_CS)
    k.salu("s_cmp_lg_u32", s(sWave), 0)
    k.salu("s_cselect_b32", s(sT0), OOB, s(sT0))
    k.bstore("buffer_store_dword", v(vT + 6), v(vT + 4), s(S_WS, 4), s(sT0), tag="cs")
    k.branch("s_branch", "L_k1_rt_fb")
    k.label("L_k1_rt_fa_wd")
    finish(0, 4, lambda i: k.salu("s_add_u32", s(sT1), s(sJ[0]["St"]), i * 256), False)
    k.label("L_k1_rt_fb")
    k.salu("s_cmp_eq_u32", s(sKind), 0)
    k.branch("s_cbranch_scc1", "L_k1_fin")
    finish(1, 4, lambda i: k.salu("s_add_u32", s(sT1), s(sJ[1]["St"]), i * 256), False)
    k.label("L_k1_fin")
    k.stamp_flush(0, "s50", "s51", WS_TS, "v38", v(vLane))
    k.label("L_end_k1_kernel")
    k.raw("s_endpgm", 4, "other")
    return k, NV, 0, K1_LDS, 512
```

```python
from common import *

KVR = 14336
ZR = 4 * KVR
EX = 65536
RT = 131072
K2_LDS = RT


def wg_map_2(k, sRb2, sCb, t0, t1):
    k.salu("s_and_b32", s(t0), "s2", 7)
    k.salu("s_lshr_b32", s(t1), "s2", 3)
    k.salu("s_lshr_b32", s(sRb2), s(t0), 1)
    k.salu("s_lshl_b32", s(sRb2), s(sRb2), 3)
    k.salu("s_and_b32", s(sCb), s(t0), 1)
    k.salu("s_lshl_b32", s(sCb), s(sCb), 2)
    k.salu("s_lshr_b32", s(t0), s(t1), 2)
    k.salu("s_add_u32", s(sRb2), s(sRb2), s(t0))
    k.salu("s_and_b32", s(t0), s(t1), 3)
    k.salu("s_add_u32", s(sCb), s(sCb), s(t0))


def h_chunk_addr(k, vA, vB, vLane, vG, vS, sRb2, sCb, sWave, t0, sT0, sT1):
    k.salu("s_lshl_b32", s(sT0), s(sRb2), 1)
    k.salu("s_lshr_b32", s(sT1), s(sWave), 1)
    k.salu("s_add_u32", s(sT0), s(sT0), s(sT1))
    k.salu("s_mul_i32", s(sT0), s(sT0), 40960)
    k.salu("s_mul_i32", s(sT1), s(sCb), 5120)
    k.salu("s_add_u32", s(sT0), s(sT0), s(sT1))
    k.salu("s_and_b32", s(sT1), s(sWave), 1)
    k.salu("s_lshl_b32", s(sT1), s(sT1), 8)
    k.salu("s_add_u32", s(sT0), s(sT0), s(sT1))
    k.salu("s_add_u32", s(sT0), s(sT0), WS_H)
    k.valu("v_lshlrev_b32", v(t0), 4, v(vS))
    k.valu("v_add_u32", v(t0), s(sT0), v(t0))
    k.valu("v_lshrrev_b32", v(vA), 1, v(vG))
    k.valu("v_lshl_add_u32", v(vA), v(vA), 10, v(t0))
    k.valu("v_and_b32", v(vB), 1, v(vG))
    k.valu("v_lshl_add_u32", v(vA), v(vB), 9, v(vA))
    k.valu("v_lshl_add_u32", v(t0), v(vB), 3, v(t0))
    k.valu("v_lshrrev_b32", v(vB), 1, v(vG))
    k.valu("v_lshl_add_u32", v(vB), v(vB), 9, v(t0))
    k.valu("v_add_u32", v(vB), 4096, v(vB))


def reduce_exchange(k, accs, own, vLane16, sWave, vT, sT0, stage):
    for ap in range(1, 4):
        k.salu("s_add_u32", s(sT0), s(sWave), ap)
        k.salu("s_and_b32", s(sT0), s(sT0), 3)
        k.salu("s_mul_i32", s(sT0), s(sT0), 15360)
        k.salu("s_add_u32", s(sT0), s(sT0), EX + (ap - 1) * 5120)
        k.valu("v_add_u32", v(vT + ap), s(sT0), v(vLane16))
        for T in range(5):
            k.ds_write("ds_write_b128", v(vT + ap), accs[ap][T], T * 1024, tag="exw")
    k.salu("s_mul_i32", s(sT0), s(sWave), 15360)
    k.salu("s_add_u32", s(sT0), s(sT0), EX)
    k.valu("v_add_u32", v(vT), s(sT0), v(vLane16))
    k.wait(lg=0)
    k.barrier()
    for i in range(15):
        k.ds_read("ds_read_b128", v(stage + 4 * i, 4), v(vT), i * 1024, tag=("exr", i))
    for src in range(3):
        for T in range(5):
            i = src * 5 + T
            k.wait_tag(lg=("exr", i))
            for h in range(2):
                k.valu("v_pk_add_f32", v(own[T] + 2 * h, 2), v(own[T] + 2 * h, 2), v(stage + 4 * i + 2 * h, 2))


def residual_pack(k, own, res, outp, tmp):
    order = []
    for p in range(2):
        order += [(own[2 * p], res + 4 * p), (own[2 * p] + 2, res + 4 * p + 1), (own[2 * p + 1], res + 4 * p + 2), (own[2 * p + 1] + 2, res + 4 * p + 3)]
    order += [(own[4], res + 8), (own[4] + 2, res + 9)]
    for i, (o, r) in enumerate(order):
        t = tmp + 4 * (i & 1)
        k.valu("v_cvt_pk_bf16_f32", v(t), v(o), v(o + 1))
        k.valu("v_lshlrev_b32", v(o), 16, v(t))
        k.valu("v_and_b32", v(o + 1), 0xFFFF0000, v(t))
        k.valu("v_lshlrev_b32", v(t + 2), 16, v(r))
        k.valu("v_and_b32", v(t + 3), 0xFFFF0000, v(r))
        k.valu("v_pk_add_f32", v(o, 2), v(o, 2), v(t + 2, 2))
        k.valu("v_cvt_pk_bf16_f32", v(outp + i), v(o), v(o + 1))
    return order


def gen_k2(cfg):
    k = K("k2_kernel")
    S_X, S_WS, S_KV, S_GU = 4, 8, 12, 16
    sWave, sRb2, sCb, sT0, sT1, sT2, sU, sMat, sCb64, sKb, sLds, sEps = 48, 49, 50, 51, 52, 53, 54, 55, 56, 57, 58, 59
    sM = 60
    vLane, vG, vS, vL16 = 1, 2, 3, 4
    vPq = 5
    vW4 = 9
    vT = 10
    KVF, D1, D2, OF = 16, 96, 144, 192
    OF3, OWN, XR = 16, 36, 96
    A_PQ, A_WO, A_ACC = 0, 80, 180

    def of(ap):
        return OF + 20 * ap if ap < 3 else OF3

    header(k, 256)
    k.diag = cfg.get("diag", False); k.diagv = "v255"
    if k.diag:
        k.valu("v_mov_b32", k.diagv, 0)
    k.stamp(0)
    k.sload(2, s(36, 2), "s[0:1]", 0)
    k.sload(2, s(46, 2), "s[0:1]", 72)
    k.valu("v_and_b32", v(vLane), 63, "v0")
    k.valu("v_lshrrev_b32", v(vT), 6, "v0")
    k.valu("v_readfirstlane_b32", s(sWave), v(vT))
    k.valu("v_lshrrev_b32", v(vG), 4, v(vLane))
    k.valu("v_and_b32", v(vS), 15, v(vLane))
    k.valu("v_lshlrev_b32", v(vL16), 4, v(vLane))
    wg_map_2(k, sRb2, sCb, sT0, sT1)
    for ap in range(4):
        k.salu("s_add_u32", s(sT0), s(sWave), ap)
        k.salu("s_and_b32", s(sT0), s(sT0), 3)
        k.salu("s_lshl_b32", s(sT0), s(sT0), 10)
        k.valu("v_add_u32", v(vPq + ap), s(sT0), v(vL16))
    k.valu("v_add_u32", v(vW4), 4096, v(vL16))
    k.salu("s_mul_i32", s(sLds), s(sWave), KVR)
    k.wait(lg=0)
    srd(k, S_X, "s36", "s37", 2621440)
    srd(k, S_WS, "s46", "s47", WS_SIZE)
    srd_off(k, S_KV, "s46", "s47", WS_KV, KV_BYTES)
    k.salu("s_mul_i32", s(sT0), s(sWave), 13440)
    for i in range(14):
        if i % 4 == 0:
            k.salu("s_add_u32", "m0", s(sLds), (i // 4) * 4096)
            k.salu("s_add_u32", s(sT1), s(sT0), (i // 4) * 4096)
        k.dma(v(vL16), s(S_KV, 4), s(sT1), offset=(i % 4) * 1024, tag="kv")
    sPq, sWo, sRt, sLo = 68, 69, 70, 71
    k.salu("s_mul_i32", s(sPq), s(sWave), 5 * 131072)
    k.salu("s_lshl_b32", s(sT1), s(sRb2), 12)
    k.salu("s_add_u32", s(sPq), s(sPq), s(sT1))
    pq_loads, wo_loads, rt_loads = [], [], []
    for ap in range(4):
        for j in range(5):
            def f(ap=ap, j=j):
                k.salu("s_add_u32", s(sLo), s(sPq), j * 131072 + WS_PQ)
                k.bload("buffer_load_dwordx4", a(A_PQ + (ap * 5 + j) * 4, 4), v(vPq + ap), s(S_WS, 4), s(sLo), tag=("pq", ap))
            pq_loads.append(f)
    k.salu("s_mul_i32", s(sWo), s(sWave), 5 * 40960)
    k.salu("s_mul_i32", s(sT1), s(sCb), 5120)
    k.salu("s_add_u32", s(sWo), s(sWo), s(sT1))
    k.salu("s_add_u32", s(sWo), s(sWo), WS_WOF)
    for j in range(5):
        for T in range(5):
            def f(j=j, T=T):
                if T < 4:
                    k.bload("buffer_load_dwordx4", a(A_WO + (j * 5 + T) * 4, 4), v(vL16), s(S_WS, 4), s(sWo), offset=T * 1024, tag="wo")
                else:
                    k.bload("buffer_load_dwordx4", a(A_WO + (j * 5 + T) * 4, 4), v(vW4), s(S_WS, 4), s(sWo), tag="wo")
                    k.salu("s_add_u32", s(sWo), s(sWo), 40960)
            wo_loads.append(f)
    lq = pq_loads + wo_loads + rt_loads

    def pump(n=1):
        for _ in range(n):
            if lq:
                lq.pop(0)()

    k.stamp(1)
    pairs = []
    for m in range(12):
        heads = sorted(set((4 * m + r) // 6 for r in range(4)))
        js = sorted(set(j for h in heads for j in range((20 * h) // 32, (20 * h + 19) // 32 + 1)))
        pairs += [(m, j) for j in js]
    assert len(pairs) == 20
    AD = D2
    U_, HP = OF, OF + 12
    V_, HD = OF + 24, OF + 34
    W_ = OF + 44
    k.valu("v_mov_b32", v(W_ + 4), 0)
    k.valu("v_mov_b32", v(W_ + 5), 0)
    k.valu("v_mov_b32", v(W_ + 6), 0)
    k.valu("v_mov_b32", v(W_ + 7), 0)
    k.valu("v_mov_b32", v(W_ + 8), ZR)
    k.ds_write("ds_write_b128", v(W_ + 8), v(W_ + 4, 4), 0, tag="z")
    k.valu("v_and_b32", v(W_), 3, v(vS))
    k.valu("v_lshrrev_b32", v(W_ + 1), 2, v(vS))
    k.valu("v_mul_u32_u24", v(W_ + 1), 5, v(W_ + 1))
    for m in range(12):
        k.valu("v_add_u32", v(W_ + 2), 4 * m, v(W_))
        divmagic(k, v(HP + m), v(W_ + 2), 6, None, 47)
        k.valu("v_mul_u32_u24", v(W_ + 3), 6, v(HP + m))
        k.valu("v_sub_u32", v(W_ + 2), v(W_ + 2), v(W_ + 3))
        k.valu("v_cmp_eq_u32", "vcc", 5, v(W_ + 2))
        k.valu("v_add_u32", v(W_ + 2), v(W_ + 2), v(W_ + 1))
        k.valu("v_mul_u32_u24", v(W_ + 3), 21, v(HP + m))
        k.valu("v_cndmask_b32", v(W_ + 2), v(W_ + 2), 20, "vcc")
        k.valu("v_add_u32", v(W_ + 2), v(W_ + 2), v(W_ + 3))
        k.valu("v_mul_u32_u24", v(W_ + 2), 80, v(W_ + 2))
        k.valu("v_add_u32", v(U_ + m), s(sLds), v(W_ + 2))
        pump()
    k.valu("v_lshlrev_b32", v(W_), 3, v(vG))
    for j in range(5):
        for b in range(2):
            i = 2 * j + b
            k.valu("v_add_u32", v(W_ + 2), 32 * j + 4 * b, v(W_))
            divmagic(k, v(HD + i), v(W_ + 2), 20, None, 159)
            k.valu("v_mul_u32_u24", v(W_ + 3), 20, v(HD + i))
            k.valu("v_sub_u32", v(W_ + 2), v(W_ + 2), v(W_ + 3))
            k.valu("v_lshlrev_b32", v(V_ + i), 2, v(W_ + 2))
            if b:
                pump()
    todo = [(pi, b) for pi in range(20) for b in range(2)]
    for c in range(0, 40, 4):
        grp = todo[c:c + 4]
        for n, (pi, b) in enumerate(grp):
            m, j = pairs[pi]
            k.valu("v_cmp_eq_u32", s(sM + 2 * n, 2), v(HP + m), v(HD + 2 * j + b))
            k.valu("v_add_u32", v(AD + 2 * pi + b), v(U_ + m), v(V_ + 2 * j + b))
        for n, (pi, b) in enumerate(grp):
            k.valu("v_cndmask_b32", v(AD + 2 * pi + b), v(W_ + 8), v(AD + 2 * pi + b), s(sM + 2 * n, 2))
        pump()
    k.salu("s_mov_b32", s(sEps), f32(EPS6))
    k.stamp(2)
    k.wait_tag(vm="kv", lg="z")
    k.stamp(3)
    groups = [list(range(i, min(i + 3, 20))) for i in range(0, 20, 3)]

    def rd(gi):
        for n, pi in enumerate(groups[gi]):
            for b in range(2):
                k.ds_read("ds_read_b128", v(D1 + (gi & 1) * 24 + n * 8 + b * 4, 4), v(AD + 2 * pi + b), 0, tag=("kf", gi))
    rd(0)
    for gi in range(len(groups)):
        if gi + 1 < len(groups):
            rd(gi + 1)
        k.wait_tag(lg=("kf", gi))
        for n, pi in enumerate(groups[gi]):
            for q in range(4):
                src = D1 + (gi & 1) * 24 + n * 8 + q * 2
                k.valu("v_cvt_pk_bf16_f32", v(KVF + pi * 4 + q), v(src), v(src + 1))
            pump()

    def M(ap):
        D = D1 if ap % 2 == 0 else D2
        ops = []
        seen = set()
        for pi, (m, j) in enumerate(pairs):
            first = m not in seen
            seen.add(m)
            ops.append(lambda pi=pi, m=m, j=j, first=first: k.mfma("16x16x32", v(D + 4 * m, 4), v(KVF + pi * 4, 4),
                                                                   a(A_PQ + (ap * 5 + j) * 4, 4), 0 if first else v(D + 4 * m, 4)))
        return ops

    def N(ap):
        D = D1 if ap % 2 == 0 else D2
        ops = []
        for h in range(8):
            b = D + 6 * h
            ops.append(lambda b=b: k.valu("v_add_f32", v(b + 5), s(sEps), v(b + 5)))
        for h in range(8):
            b = D + 6 * h
            ops.append(lambda b=b: k.valu("v_rcp_f32", v(b + 5), v(b + 5)))
        done = 0
        for h in range(8):
            b = D + 6 * h
            for i in range(5):
                ops.append(lambda b=b, i=i: k.valu("v_mul_f32", v(b + i), v(b + i), v(b + 5)))
            while 2 * done + 1 <= 5 * h + 4:
                f0, f1 = 2 * done, 2 * done + 1
                r0, r1 = D + 6 * (f0 // 5) + f0 % 5, D + 6 * (f1 // 5) + f1 % 5
                ops.append(lambda d=done, r0=r0, r1=r1: k.valu("v_cvt_pk_bf16_f32", v(of(ap) + d), v(r0), v(r1)))
                done += 1
        assert done == 20
        return ops

    def interleave(mf, fl, per):
        fi = 0
        for ii, f in enumerate(mf):
            f()
            if ii % 2 == 1:
                pump()
            for _ in range(per):
                if fi < len(fl):
                    fl[fi]()
                    fi += 1
        while fi < len(fl):
            fl[fi]()
            fi += 1

    k.stamp(4)
    k.wait_tag(vm=("pq", 0))
    k.stamp(5)
    interleave(M(0), [], 0)
    for ap in range(1, 4):
        k.wait_tag(vm=("pq", ap))
        interleave(M(ap), N(ap - 1), 3)
    pump(100)
    k.salu("s_lshl_b32", s(sT0), s(sRb2), 6)
    k.salu("s_lshl_b32", s(sT1), s(sWave), 4)
    k.salu("s_add_u32", s(sT0), s(sT0), s(sT1))
    k.salu("s_mul_i32", s(sT0), s(sT0), 1280)
    k.salu("s_mul_i32", s(sT1), s(sCb), 160)
    k.salu("s_add_u32", s(sT0), s(sT0), s(sT1))
    k.valu("v_mul_u32_u24", v(vT), 1280, v(vS))
    k.valu("v_lshl_add_u32", v(vT + 1), v(vG), 3, v(vT))
    k.valu("v_lshl_add_u32", v(vT), v(vG), 4, v(vT))
    k.bload("buffer_load_dwordx4", v(XR, 4), v(vT), s(S_X, 4), s(sT0), tag="x")
    k.bload("buffer_load_dwordx4", v(XR + 4, 4), v(vT), s(S_X, 4), s(sT0), offset=64, tag="x")
    k.bload("buffer_load_dwordx2", v(XR + 8, 2), v(vT + 1), s(S_X, 4), s(sT0), offset=128, tag="x")

    def accr(ap, T):
        return v(OWN + 4 * T, 4) if ap == 0 else a(A_ACC + ((ap - 1) * 5 + T) * 4, 4)

    def G(ap):
        ops = []
        for j in range(5):
            for T in range(5):
                ops.append(lambda j=j, T=T: k.mfma("16x16x32", accr(ap, T), a(A_WO + (j * 5 + T) * 4, 4), v(of(ap) + 4 * j, 4),
                                                   0 if j == 0 else accr(ap, T)))
        return ops
    k.stamp(6)
    k.wait_tag(vm="wo")
    k.stamp(7)
    interleave(G(1) + G(2), N(3), 2)
    interleave(G(0) + G(3), [], 0)
    k.stamp(8)
    own = [OWN + 4 * T for T in range(5)]
    accs = {ap: [accr(ap, T) for T in range(5)] for ap in range(1, 4)}
    reduce_exchange(k, accs, own, vL16, sWave, vT, sT0, D2)
    k.stamp(9)
    OUTP, TMP = 112, 124
    vHA, vHB = 132, 133
    h_chunk_addr(k, vHA, vHB, vLane, vG, vS, sRb2, sCb, sWave, 134, sT0, sT1)
    k.wait_tag(vm="x")
    order = residual_pack(k, own, XR, OUTP, TMP)
    k.bstore("buffer_store_dwordx4", v(OUTP, 4), v(vHA), s(S_WS, 4), 0, tag="h")
    k.bstore("buffer_store_dwordx4", v(OUTP + 4, 4), v(vHA), s(S_WS, 4), 0, offset=2048, tag="h")
    k.bstore("buffer_store_dwordx2", v(OUTP + 8, 2), v(vHB), s(S_WS, 4), 0, tag="h")
    vSm, vSq, vOne = 136, 137, 138
    k.valu("v_mov_b32", v(vSm), 0)
    k.valu("v_mov_b32", v(vSq), 0)
    k.valu("v_mov_b32", v(vOne), ONES_BF16)
    for i in range(10):
        k.valu("v_dot2c_f32_bf16", v(vSm), v(OUTP + i), v(vOne))
        k.valu("v_dot2c_f32_bf16", v(vSq), v(OUTP + i), v(OUTP + i))
    xsum_g(k, v(vSm), v(139))
    xsum_g(k, v(vSq), v(140))
    k.valu("v_cmp_eq_u32", "vcc", 1, v(vG))
    k.valu("v_cndmask_b32", v(vSm), v(vSm), v(vSq), "vcc")
    k.valu("v_lshlrev_b32", v(139), 3, v(vS))
    k.valu("v_lshl_add_u32", v(139), v(vG), 2, v(139))
    k.valu("v_mov_b32", v(140), OOB)
    k.valu("v_cmp_gt_u32", "vcc", 2, v(vG))
    k.valu("v_cndmask_b32", v(139), v(140), v(139), "vcc")
    k.salu("s_lshl_b32", s(sT0), s(sRb2), 9)
    k.salu("s_lshl_b32", s(sT1), s(sWave), 7)
    k.salu("s_add_u32", s(sT0), s(sT0), s(sT1))
    k.salu("s_add_u32", s(sT0), s(sT0), WS_ST)
    k.bstore("buffer_atomic_add_f32", v(vSm), v(139), s(S_WS, 4), s(sT0), tag="st")

    k.stamp_flush(1, "s46", "s47", WS_TS, "v254", v(vLane))
    k.label("L_end_k2_kernel")
    k.raw("s_endpgm", 4, "other")
    return k, 256, 240, K2_LDS
```

```python
from common import *


def gen_k3(cfg):
    passes = cfg.get("k3_passes", [[0, 1, 2, 3, 4], [5], [6]])
    PRE = cfg.get("k3_pre", 3)
    DEPTH = cfg.get("k3_depth", 3)
    BUD = cfg.get("k3_budget", 4)
    LOOK = cfg.get("k3_look", 8)
    SLOTB = max(16384, max(len(p) for p in passes) * 4096)
    R = cfg.get("k3_ring", min(8, (163840 - 1024) // SLOTB))
    CSL = R * SLOTB
    RT = CSL + 1024
    LDS = RT
    assert LDS <= 163840
    k = K("k3_kernel")
    S_WS, S_WD = 4, 8
    sWave, sRb, sFb, sT0, sT1, sT2, sTz, sWb, sW4, sW1, sH, sLw, sU, sCb64, sOb, sC640 = range(48, 64)
    sAct = 64
    sL1, sW2, sLo = 71, 72, 73
    vLane, vHf, vS32, vL16 = 1, 2, 3, 4
    vRd = 5
    vCsA = 8
    vSt = 9
    vNm, vK1, vK2 = 10, 12, 14
    vT = 16
    vG16, vS16 = 24, 25
    ACC = 32
    CSR = 144
    EW = 176
    NV = 208
    A_H, A_W = 0, 160
    NWB = 12

    header(k, 256)
    k.diag = cfg.get("diag", False); k.diagv = "v31"
    if k.diag:
        k.valu("v_mov_b32", k.diagv, 0)
    k.stamp(0)
    k.sload(2, s(46, 2), "s[0:1]", 72)
    k.valu("v_and_b32", v(vLane), 63, "v0")
    k.valu("v_lshrrev_b32", v(vT), 6, "v0")
    k.valu("v_readfirstlane_b32", s(sWave), v(vT))
    k.valu("v_lshrrev_b32", v(vHf), 5, v(vLane))
    k.valu("v_and_b32", v(vS32), 31, v(vLane))
    k.valu("v_lshlrev_b32", v(vL16), 4, v(vLane))
    k.valu("v_lshrrev_b32", v(vG16), 4, v(vLane))
    k.valu("v_and_b32", v(vS16), 15, v(vLane))
    k.salu("s_and_b32", s(sT0), "s2", 7)
    k.salu("s_lshr_b32", s(sT1), "s2", 3)
    k.salu("s_lshr_b32", s(sRb), s(sT0), 1)
    k.salu("s_lshl_b32", s(sRb), s(sRb), 2)
    k.salu("s_lshr_b32", s(sT2), s(sT1), 3)
    k.salu("s_add_u32", s(sRb), s(sRb), s(sT2))
    k.salu("s_and_b32", s(sFb), s(sT0), 1)
    k.salu("s_lshl_b32", s(sFb), s(sFb), 3)
    k.salu("s_and_b32", s(sT2), s(sT1), 7)
    k.salu("s_add_u32", s(sFb), s(sFb), s(sT2))
    k.salu("s_mul_i32", s(sTz), s(sFb), 7)
    k.salu("s_min_u32", s(sTz), s(sTz), 101)
    k.salu("s_mul_i32", s(sWb), s(sTz), 40960)
    k.salu("s_add_u32", s(sWb), s(sWb), WS_WGUF)
    k.salu("s_mul_i32", s(sW4), s(sWave), 40960)
    k.salu("s_add_u32", s(sW4), s(sW4), s(sWb))
    k.salu("s_lshl_b32", s(sL1), s(sWave), 10)
    k.salu("s_add_u32", s(sW1), s(sWb), s(sL1))
    k.salu("s_lshl_b32", s(sLw), s(sWave), 12)
    k.salu("s_and_b32", s(sT0), s(sWave), 1)
    k.salu("s_mul_i32", s(sW2), s(sT0), 40960)
    k.salu("s_lshr_b32", s(sT0), s(sWave), 1)
    k.salu("s_lshl_b32", s(sT0), s(sT0), 12)
    k.salu("s_add_u32", s(sW2), s(sW2), s(sT0))
    k.salu("s_add_u32", s(sW2), s(sW2), s(sWb))
    k.salu("s_lshl_b32", s(sT0), s(sRb), 2)
    k.salu("s_add_u32", s(sT0), s(sT0), s(sWave))
    k.salu("s_mul_i32", s(sH), s(sT0), 40960)
    k.salu("s_add_u32", s(sH), s(sH), WS_H)
    k.wait(lg=0)
    srd(k, S_WS, "s46", "s47", WS_SIZE)

    stages = []
    seq = []
    for pi, P in enumerate(passes):
        nt = len(P)
        JS = 4 if nt >= 3 else (8 if nt == 2 else 16)
        for si in range((40 + JS - 1) // JS):
            st = len(stages)
            stages.append((pi, si, JS))
            for jj in range(JS):
                J = si * JS + jj
                if J >= 40:
                    break
                for ti, t in enumerate(P):
                    if JS == 4:
                        off = ti * 4096 + jj * 1024
                    elif JS == 8:
                        off = ((jj >> 2) * 2 + ti) * 4096 + (jj & 3) * 1024
                    else:
                        off = jj * 1024
                    seq.append((st, off, t, J))
    NST = len(stages)
    assert len(seq) == 280
    nloads = {}

    def issue_stage(st):
        pi, si, JS = stages[st]
        P = passes[pi]
        nt = len(P)
        ops = []
        slot = (st % R) * SLOTB

        def run4(lbase, lo, wbase, wo):
            for jl in range(4):
                def f(jl=jl):
                    if jl == 0:
                        k.salu("s_add_u32", "m0", s(lbase), lo)
                        k.salu("s_add_u32", s(sT2), s(wbase), wo)
                    k.dma(v(vL16), s(S_WS, 4), s(sT2), offset=jl * 1024, tag=("st", st))
                ops.append(f)

        def single(ti):
            def f():
                k.salu("s_add_u32", "m0", s(sL1), slot + ti * 4096)
                k.salu("s_add_u32", s(sLo), s(sW1), P[ti] * 40960 + si * 4096)
                k.dma(v(vL16), s(S_WS, 4), s(sLo), tag=("st", st))
            ops.append(f)
        if JS == 4:
            if nt >= 4:
                run4(sLw, slot, sW4, P[0] * 40960 + si * 4096)
                for ti in range(4, nt):
                    single(ti)
            else:
                for ti in range(nt):
                    single(ti)
        elif JS == 8:
            run4(sLw, slot, sW2, P[0] * 40960 + si * 8192)
        else:
            k_ = P[0] * 40960 + si * 16384
            for jl in range(4):
                def f(jl=jl):
                    if jl == 0:
                        k.salu("s_add_u32", "m0", s(sLw), slot)
                        k.salu("s_add_u32", s(sT2), s(sWb), k_)
                        k.salu("s_add_u32", s(sT2), s(sT2), s(sLw))
                    k.dma(v(vL16), s(S_WS, 4), s(sT2), offset=jl * 1024, tag=("st", st))
                ops.append(f)
        if pi == 0:
            hops = []
            for jl in range(JS):
                J = si * JS + jl
                if J >= 40:
                    break
                def f(J=J):
                    if J % 4 == 0:
                        k.salu("s_add_u32", s(sT1), s(sH), (J // 4) * 4096)
                    k.bload("buffer_load_dwordx4", a(A_H + J * 4, 4), v(vL16), s(S_WS, 4), s(sT1), offset=(J % 4) * 1024, tag=("st", st))
                hops.append(f)
            ops = hops + ops
        nloads[st] = len(ops)
        return ops

    for f in issue_stage(0):
        f()
    k.salu("s_lshl_b32", s(sT0), s(sT0), 8)
    k.salu("s_add_u32", s(sT0), s(sT0), WS_ST)
    k.valu("v_lshlrev_b32", v(vT), 3, v(vS32))
    k.bload("buffer_load_dwordx2", v(vT + 2, 2), v(vT), s(S_WS, 4), s(sT0), tag="stat")
    k.salu("s_mov_b32", "m0", CSL)
    k.salu("s_lshl_b32", s(sT0), s(sTz), 7)
    k.salu("s_add_u32", s(sT0), s(sT0), WS_CS)
    k.dma(v(vL16), s(S_WS, 4), s(sT0), tag="stat")
    for st in range(1, PRE):
        for f in issue_stage(st):
            f()
    k.stamp(1)
    for i in range(3):
        k.valu("v_add_u32", v(vRd + i), 65536 * i, v(vL16))
    k.valu("v_lshlrev_b32", v(vCsA), 4, v(vHf))
    k.valu("v_add_u32", v(vCsA), CSL, v(vCsA))
    k.salu("s_lshl_b32", s(sT0), s(sRb), 3)
    k.salu("s_lshl_b32", s(sT1), s(sWave), 1)
    k.salu("s_add_u32", s(sT0), s(sT0), s(sT1))
    k.salu("s_lshl_b32", s(sT0), s(sT0), 10)
    k.valu("v_bfe_u32", v(vSt), v(vLane), 4, 1)
    k.valu("v_lshlrev_b32", v(vSt), 10, v(vSt))
    k.valu("v_lshl_add_u32", v(vSt), v(vHf), 8, v(vSt))
    k.valu("v_lshl_add_u32", v(vSt), v(vS16), 4, v(vSt))
    k.valu("v_add_u32", v(vSt), s(sT0), v(vSt))
    for t in range(7):
        k.salu("s_add_u32", s(sT0), s(sTz), t)
        k.salu("s_lshr_b32", s(sT1), s(sT0), 1)
        k.salu("s_lshl_b32", s(sT1), s(sT1), 17)
        k.salu("s_and_b32", s(sT0), s(sT0), 1)
        k.salu("s_lshl_b32", s(sT0), s(sT0), 9)
        k.salu("s_add_u32", s(sT0), s(sT0), s(sT1))
        k.salu("s_add_u32", s(sAct + t), s(sT0), WS_ACT)
    k.salu("s_mov_b32", s(sC640), f32(1.0 / 640))
    k.wait_tag(vm="stat")
    ln_stats(k, v(vT + 2), v(vT + 3), v(vNm), v(vK1), v(vT), s(sC640))
    k.valu("v_mul_f32", v(vK2), v(vT), v(vT))
    k.valu("v_sub_f32", v(vNm), 0, v(vNm))
    k.valu("v_mul_f32", v(vK1), f32(-LOG2E), v(vK1))

    def wread(n):
        st, off, t, J = seq[n]
        addr = (st % R) * SLOTB + off
        k.ds_read("ds_read_b128", a(A_W + (n % NWB) * 4, 4), v(vRd + addr // 65536), addr % 65536, tag=("wf", n))

    def epi_ops(t, pk, first=True):
        A = ACC + 16 * t
        C = CSR + 16 * (t & 1)
        W = EW + 16 * (t & 1)
        ops = []
        for q in range(4):
            ops.append(lambda q=q: k.ds_read("ds_read_b128", v(C + 4 * q, 4), v(vCsA), t * 128 + q * 32, tag=("cs", t)))
        head = ops
        ops = []
        ops.append(lambda: k.wait_tag(lg=("cs", t)))
        if pk:
            for i in range(0, 8, 2):
                ops.append(lambda i=i: k.valu("v_pk_fma_f32", v(A + i, 2), v(vNm, 2), v(C + i, 2), v(A + i, 2), mods="op_sel_hi:[0,1,1]"))
            for i in range(0, 8, 2):
                ops.append(lambda i=i: k.valu("v_pk_mul_f32", v(W + i, 2), v(vK1, 2), v(A + i, 2), mods="op_sel_hi:[0,1]"))
            for i in range(8):
                ops.append(lambda i=i: k.valu("v_exp_f32", v(W + i), v(W + i)))
                if i % 2:
                    ops.append(lambda i=i: k.valu("v_pk_fma_f32", v(A + 7 + i, 2), v(vNm, 2), v(C + 7 + i, 2), v(A + 7 + i, 2), mods="op_sel_hi:[0,1,1]"))
            for i in range(0, 8, 2):
                ops.append(lambda i=i: k.valu("v_pk_fma_f32", v(W + i, 2), v(W + i, 2), v(vK2, 2), v(vK2, 2), mods="op_sel_hi:[1,0,0]"))
            for i in range(8):
                ops.append(lambda i=i: k.valu("v_rcp_f32", v(W + i), v(W + i)))
                if i % 2:
                    ops.append(lambda i=i: k.valu("v_pk_mul_f32", v(A + i - 1, 2), v(A + i - 1, 2), v(A + 7 + i, 2)))
            for i in range(0, 8, 2):
                ops.append(lambda i=i: k.valu("v_pk_mul_f32", v(A + i, 2), v(A + i, 2), v(W + i, 2)))
        else:
            for i in range(8):
                ops.append(lambda i=i: k.valu("v_fma_f32", v(A + i), v(vNm), v(C + i), v(A + i)))
            for i in range(8):
                ops.append(lambda i=i: k.valu("v_mul_f32", v(W + i), v(vK1), v(A + i)))
            for i in range(8):
                ops.append(lambda i=i: k.valu("v_exp_f32", v(W + i), v(W + i)))
                ops.append(lambda i=i: k.valu("v_fma_f32", v(A + 8 + i), v(vNm), v(C + 8 + i), v(A + 8 + i)))
            for i in range(8):
                ops.append(lambda i=i: k.valu("v_fma_f32", v(W + i), v(W + i), v(vK2), v(vK2)))
            for i in range(8):
                ops.append(lambda i=i: k.valu("v_rcp_f32", v(W + i), v(W + i)))
                ops.append(lambda i=i: k.valu("v_mul_f32", v(A + i), v(A + i), v(A + 8 + i)))
            for i in range(8):
                ops.append(lambda i=i: k.valu("v_mul_f32", v(A + i), v(A + i), v(W + i)))
        for i in range(4):
            ops.append(lambda i=i: k.valu("v_cvt_pk_bf16_f32", v(W + 8 + i), v(A + 2 * i), v(A + 2 * i + 1)))
        ops.append(lambda: k.bstore("buffer_store_dwordx4", v(W + 8, 4), v(vSt), s(S_WS, 4), s(sAct + t), tag="act"))
        return head, ops

    k.wait_tag(vm=("st", 0))
    k.barrier()
    k.stamp(2)
    barred = 0
    nread = 0
    next_stage = PRE
    fill = []
    loads = []
    rt_issued = False
    pass_end = {}
    c = 0
    for pi, P in enumerate(passes):
        c += 40 * len(P)
        pass_end[c - 1] = pi
    hold = 0
    done_tiles = []
    for n in range(280):
        st, off, t, J = seq[n]
        while nread < min(280, n + LOOK + 1):
            ns = seq[nread][0]
            if ns > barred:
                assert k.vm.count(("st", ns)) == nloads[ns], (ns, k.vm)
                k.wait_tag(vm=("st", ns), lg=(lambda tg, ns=ns: isinstance(tg, tuple) and tg[0] == "wf" and seq[tg[1]][0] <= ns - 2))
                k.barrier()
                barred = ns
                while next_stage < NST and next_stage <= ns - 2 + R and next_stage <= ns + DEPTH + (2 if stages[ns][0] > 0 else 0):
                    loads += issue_stage(next_stage)
                    next_stage += 1
            wread(nread)
            nread += 1
        if n in (40, 80, 120, 160, 200, 240):
            k.stamp(2 + n // 40)
        if n % 2 == 0:
            k.wait_tag(lg=("wf", n + 1))
        d = v(ACC + 16 * t, 16)
        k.mfma("32x32x16", d, a(A_W + (n % NWB) * 4, 4), a(A_H + 4 * J, 4), 0 if J == 0 else d)
        if n in pass_end and n != 279:
            for tt in passes[pass_end[n]]:
                fill.append(tt)
            hold = 2
        budget = BUD
        if loads:
            loads.pop(0)()
            budget -= 2
        if hold:
            hold -= 1
        else:
            while budget > 0 and fill:
                if isinstance(fill[0], int):
                    tt = fill.pop(0)
                    hd, bd = epi_ops(tt, False)
                    fill = hd + bd + fill
                fill.pop(0)()
                budget -= 1
    k.stamp(9)
    while loads:
        loads.pop(0)()
    while fill and not isinstance(fill[0], int):
        fill.pop(0)()
    rest = list(fill) + list(passes[-1])
    eps = [epi_ops(tt, True) for tt in rest]
    for f in eps[0][0]:
        f()
    k.stamp(10)
    for i, (hd, bd) in enumerate(eps):
        bd[0]()
        if i + 1 < len(eps):
            for f in eps[i + 1][0]:
                f()
        for f in bd[1:]:
            f()
    k.stamp_flush(2, "s46", "s47", WS_TS, "v30", v(vLane))
    k.label("L_end_k3_kernel")
    k.raw("s_endpgm", 4, "other")
    return k, NV, 160 + NWB * 4, LDS
```

```python
from common import *
from k2 import wg_map_2, h_chunk_addr, reduce_exchange, residual_pack, EX

K4_LDS = EX + 4 * 15360


def gen_k4(cfg):
    DB = cfg.get("k4_depth", 7)
    k = K("k4_kernel")
    S_WS, S_ACT, S_WD, S_OUT = 4, 8, 12, 16
    sWave, sRb2, sCb, sT0, sT1, sA, sW = range(48, 55)
    vLane, vG, vS, vL16 = 1, 2, 3, 4
    vAq = 5
    vW4 = 9
    vT = 10
    ACC = 16
    HR = 96
    OUTP, TMP = 112, 124
    vHA, vHB = 132, 133
    STG = 144
    NV = 204

    header(k, 256)
    k.diag = cfg.get("diag", False); k.diagv = "v140"
    if k.diag:
        k.valu("v_mov_b32", k.diagv, 0)
    k.stamp(0)
    k.sload(2, s(40, 2), "s[0:1]", 56)
    k.sload(2, s(46, 2), "s[0:1]", 72)
    k.valu("v_and_b32", v(vLane), 63, "v0")
    k.valu("v_lshrrev_b32", v(vT), 6, "v0")
    k.valu("v_readfirstlane_b32", s(sWave), v(vT))
    k.valu("v_lshrrev_b32", v(vG), 4, v(vLane))
    k.valu("v_and_b32", v(vS), 15, v(vLane))
    k.valu("v_lshlrev_b32", v(vL16), 4, v(vLane))
    wg_map_2(k, sRb2, sCb, sT0, sT1)
    for ap in range(4):
        k.salu("s_add_u32", s(sT0), s(sWave), ap)
        k.salu("s_and_b32", s(sT0), s(sT0), 3)
        k.salu("s_lshl_b32", s(sT0), s(sT0), 10)
        k.valu("v_add_u32", v(vAq + ap), s(sT0), v(vL16))
    k.valu("v_add_u32", v(vW4), 4096, v(vL16))
    k.salu("s_lshl_b32", s(sA), s(sWave), 17)
    k.salu("s_lshl_b32", s(sT0), s(sRb2), 12)
    k.salu("s_add_u32", s(sA), s(sA), s(sT0))
    k.salu("s_mul_i32", s(sW), s(sWave), 40960)
    k.salu("s_mul_i32", s(sT0), s(sCb), 5120)
    k.salu("s_add_u32", s(sW), s(sW), s(sT0))
    k.wait(lg=0)
    srd(k, S_WS, "s46", "s47", WS_SIZE)
    srd_off(k, S_ACT, "s46", "s47", WS_ACT, ACT_BYTES)
    srd_off(k, S_WD, "s46", "s47", WS_WDF, WDF_BYTES)
    srd(k, S_OUT, "s40", "s41", 2621440)

    def issue(i):
        b = (i % DB) * 36
        ops = []
        for T in range(5):
            def f(T=T):
                if T < 4:
                    k.bload("buffer_load_dwordx4", a(b + 16 + 4 * T, 4), v(vL16), s(S_WD, 4), s(sW), offset=T * 1024, tag=("st", i))
                else:
                    k.bload("buffer_load_dwordx4", a(b + 16 + 4 * T, 4), v(vW4), s(S_WD, 4), s(sW), tag=("st", i))
                    k.salu("s_add_u32", s(sW), s(sW), 4 * 40960)
            ops.append(f)
        for ap in range(4):
            def f(ap=ap):
                k.bload("buffer_load_dwordx4", a(b + 4 * ap, 4), v(vAq + ap), s(S_ACT, 4), s(sA), tag=("st", i))
                if ap == 3:
                    k.salu("s_add_u32", s(sA), s(sA), 4 * 131072)
            ops.append(f)
        return ops

    for i in range(DB):
        for f in issue(i):
            f()
    k.stamp(1)
    h_chunk_addr(k, vHA, vHB, vLane, vG, vS, sRb2, sCb, sWave, 134, sT0, sT1)
    pend = []
    for i in range(14):
        b = (i % DB) * 36
        while pend:
            pend.pop(0)()
        k.wait_tag(vm=("st", i))
        if i in (0, 2, 4, 6, 8, 10, 12):
            k.stamp(2 + i // 2)
        for ap in range(4):
            for T in range(5):
                d = v(ACC + (ap * 5 + T) * 4, 4)
                k.mfma("16x16x32", d, a(b + 16 + 4 * T, 4), a(b + 4 * ap, 4), 0 if i == 0 else d)
        if i + DB < 14:
            pend = issue(i + DB)
        if i + DB == 14:
            def hl():
                k.bload("buffer_load_dwordx4", v(HR, 4), v(vHA), s(S_WS, 4), 0, tag="h")
                k.bload("buffer_load_dwordx4", v(HR + 4, 4), v(vHA), s(S_WS, 4), 0, offset=2048, tag="h")
                k.bload("buffer_load_dwordx2", v(HR + 8, 2), v(vHB), s(S_WS, 4), 0, tag="h")
            pend = [hl]
    k.stamp(9)
    own = [ACC + 4 * T for T in range(5)]
    accs = {ap: [v(ACC + (ap * 5 + T) * 4, 4) for T in range(5)] for ap in range(1, 4)}
    reduce_exchange(k, accs, own, vL16, sWave, vT, sT0, STG)
    k.salu("s_lshl_b32", s(sT0), s(sRb2), 6)
    k.salu("s_lshl_b32", s(sT1), s(sWave), 4)
    k.salu("s_add_u32", s(sT0), s(sT0), s(sT1))
    k.salu("s_mul_i32", s(sT0), s(sT0), 1280)
    k.salu("s_mul_i32", s(sT1), s(sCb), 160)
    k.salu("s_add_u32", s(sT0), s(sT0), s(sT1))
    k.valu("v_mul_u32_u24", v(vT), 1280, v(vS))
    k.valu("v_lshl_add_u32", v(vT + 1), v(vG), 3, v(vT))
    k.valu("v_lshl_add_u32", v(vT), v(vG), 4, v(vT))
    k.stamp(10)
    k.wait_tag(vm="h")
    residual_pack(k, own, HR, OUTP, TMP)
    k.bstore("buffer_store_dwordx4", v(OUTP, 4), v(vT), s(S_OUT, 4), s(sT0), tag="o")
    k.bstore("buffer_store_dwordx4", v(OUTP + 4, 4), v(vT), s(S_OUT, 4), s(sT0), offset=64, tag="o")
    k.bstore("buffer_store_dwordx2", v(OUTP + 8, 2), v(vT + 1), s(S_OUT, 4), s(sT0), offset=128, tag="o")
    k.stamp_flush(3, "s46", "s47", WS_TS, "v141", v(vLane))
    k.label("L_end_k4_kernel")
    k.raw("s_endpgm", 4, "other")
    return k, NV, DB * 36, K4_LDS
```

```python
import sys, json
from common import *
from k1 import gen_k1
from k2 import gen_k2
from k3 import gen_k3
from k4 import gen_k4

HDR = open("sequential_preLN__linear_attn_block__swiglu_ffn__prompt.s.ref").read().split("; Override launch")[0]

def build(cfg):
    ks = [gen_k1(cfg), gen_k2(cfg), gen_k3(cfg), gen_k4(cfg)]
    ks = [x if len(x) == 5 else x + (256,) for x in ks]
    out = HDR
    for k, nv, na, lds, blk in ks:
        out += "; @launch kernel=%s grid=(256,1,1) block=(%d,1,1) lds=%d\n" % (k.name, blk, lds)
    out += '.amdgcn_target "amdgcn-amd-amdhsa--gfx950"\n.text\n'
    for k, nv, na, lds, blk in ks:
        k.hazards()
        if cfg.get("align", 1):
            k.align8()
        out += ".globl %s\n.p2align 8\n.type %s,@function\n%s:\n" % (k.name, k.name, k.name)
        out += k.text()
        sys.stderr.write("%s: %d bytes, %d instrs\n" % (k.name, k.size(), sum(1 for i in k.ins if i.size)))
    out += ".p2align 8\nL_code_end:\n    s_endpgm\n"
    out += '.section .rodata,"a"\n'
    for k, nv, na, lds, blk in ks:
        out += descriptor(k.name, nv, na)
    return out

if __name__ == "__main__":
    cfg = json.loads(sys.argv[2]) if len(sys.argv) > 2 else {}
    open(sys.argv[1], "w").write(build(cfg))
```

```python
import re


def v(n, c=1):
    return ("v%d" % n) if c == 1 else "v[%d:%d]" % (n, n + c - 1)


def a(n, c=1):
    return ("a%d" % n) if c == 1 else "a[%d:%d]" % (n, n + c - 1)


def s(n, c=1):
    return ("s%d" % n) if c == 1 else "s[%d:%d]" % (n, n + c - 1)


_REG = re.compile(r"^-?(?:abs\()?([vas])(?:(\d+)|\[(\d+):(\d+)\])\)?$")


def regs_of(op):
    if not isinstance(op, str):
        return []
    op = op.strip()
    if op in ("vcc", "exec", "m0", "scc"):
        return [op]
    if op in ("vcc_lo", "vcc_hi"):
        return ["vcc"]
    if op in ("exec_lo", "exec_hi"):
        return ["exec"]
    m = _REG.match(op)
    if not m:
        return []
    k = m.group(1)
    if m.group(2) is not None:
        return [k + m.group(2)]
    return [k + str(i) for i in range(int(m.group(3)), int(m.group(4)) + 1)]


INLINE_F = {"0.5", "-0.5", "1.0", "-1.0", "2.0", "-2.0", "4.0", "-4.0"}


def is_literal(op):
    if isinstance(op, int):
        return not (-16 <= op <= 64)
    if isinstance(op, float):
        return True
    if isinstance(op, str):
        if regs_of(op) or op in INLINE_F or op in ("off",):
            return False
        try:
            x = int(op, 0)
            return not (-16 <= x <= 64)
        except ValueError:
            return True
    return False


def fmt(op):
    if isinstance(op, int):
        return str(op) if -16 <= op <= 64 else ("0x%x" % (op & 0xFFFFFFFF))
    return str(op)


TRANS = ("v_exp_f32", "v_log_f32", "v_rcp_f32", "v_rsq_f32", "v_sqrt_f32", "v_sin_f32", "v_cos_f32")
VOP3_ONLY = (
    "v_fma_f32", "v_mad_u32_u24", "v_mul_lo_u32", "v_mul_hi_u32", "v_add3_u32", "v_lshl_add_u32", "v_add_lshl_u32",
    "v_and_or_b32", "v_bfe_u32", "v_lshl_or_b32", "v_perm_b32", "v_cvt_pk_bf16_f32", "v_med3_f32", "v_max3_f32",
    "v_pk_mul_f32", "v_pk_fma_f32", "v_pk_add_f32", "v_accvgpr_read_b32", "v_accvgpr_write_b32", "v_dot2_f32_bf16",
    "v_or3_b32", "v_xad_u32", "v_mbcnt_lo_u32_b32", "v_mbcnt_hi_u32_b32", "v_readlane_b32", "v_writelane_b32",
    "v_bfi_b32", "v_min3_f32", "v_mad_i32_i24", "v_pk_mov_b32",
)


class Ins:
    __slots__ = ("text", "size", "kind", "rd", "wr", "meta", "widen")

    def __init__(self, text, size, kind, rd=(), wr=(), meta=None, widen=None):
        self.text, self.size, self.kind = text, size, kind
        self.rd, self.wr = set(rd), set(wr)
        self.meta = meta or {}
        self.widen = widen


class K:
    def __init__(self, name):
        self.name = name
        self.ins = []
        self.vm = []
        self.lg = []

    def raw(self, text, size=4, kind="other", rd=(), wr=(), meta=None):
        self.ins.append(Ins(text, size, kind, rd, wr, meta))

    def label(self, name):
        self.ins.append(Ins(name + ":", 0, "label"))

    def comment(self, t):
        self.ins.append(Ins("; " + t, 0, "comment"))

    def valu(self, op, dst, *srcs, mods="", rmw=False, extra_rd=(), extra_wr=()):
        rd = []
        for x in srcs:
            rd += regs_of(x)
        wr = regs_of(dst)
        if rmw or op in ("v_fmac_f32", "v_dot2c_f32_bf16"):
            rd += wr
        rd += list(extra_rd)
        wr = wr + list(extra_wr)
        lit = any(is_literal(x) for x in srcs)
        e64 = op in VOP3_ONLY or mods != "" or any(isinstance(x, str) and (x.startswith("-v") or x.startswith("-s") or x.startswith("abs") or x.startswith("-a")) for x in srcs)
        if len(srcs) >= 2 and not e64 and not op.startswith("v_cmp") and op != "v_cndmask_b32":
            r1 = regs_of(srcs[1])
            if not r1 or r1[0][0] != "v" or r1[0] in ("vcc",):
                e64 = True
        if op.startswith("v_cmp"):
            if dst != "vcc":
                e64 = True
            r1 = regs_of(srcs[1])
            if not r1 or r1[0][0] != "v":
                e64 = True
        if op == "v_cndmask_b32":
            if srcs[2] != "vcc":
                e64 = True
            r1 = regs_of(srcs[1])
            if not r1 or r1[0][0] != "v":
                e64 = True
        if op in ("v_fmaak_f32", "v_fmamk_f32"):
            size = 8
        elif e64:
            assert not lit, "literal in VOP3: %s %s" % (op, srcs)
            size = 8
        else:
            size = 8 if lit else 4
        kind = "valu"
        if op in TRANS:
            kind = "trans"
        elif op.startswith("v_dot"):
            kind = "dot"
        elif op.startswith("v_permlane"):
            kind = "permlane"
            rd += wr + regs_of(srcs[0])
            wr = wr + regs_of(srcs[0])
        elif op in ("v_readfirstlane_b32", "v_readlane_b32"):
            kind = "readlane"
        body = ", ".join([fmt(dst)] + [fmt(x) for x in srcs])
        text = "%s %s%s" % (op, body, (" " + mods) if mods else "")
        widen = None
        if size == 4 and kind in ("valu", "trans") and op not in ("v_readfirstlane_b32",):
            widen = "%s_e64 %s" % (op, body)
        self.ins.append(Ins(text, size, kind, rd, wr, {"op": op}, widen))

    def mfma(self, shape, d, A, B, C):
        op = "v_mfma_f32_%s_bf16" % shape
        p = 4 if shape == "16x16x32" else 8
        rd = regs_of(A) + regs_of(B) + regs_of(C)
        self.ins.append(Ins("%s %s, %s, %s, %s" % (op, d, A, B, fmt(C)), 8, "mfma", rd, regs_of(d),
                            {"pass": p, "ab": set(regs_of(A) + regs_of(B)), "c": regs_of(C), "d": regs_of(d)}))

    def salu(self, op, dst, *srcs):
        rd = []
        for x in srcs:
            rd += regs_of(x)
        wr = regs_of(dst) if dst is not None else []
        lit = any(is_literal(x) for x in srcs)
        if op.startswith("s_cmp"):
            allops = [dst] + list(srcs)
            rd = []
            for x in allops:
                rd += regs_of(x)
            wr = ["scc"]
            lit = any(is_literal(x) for x in allops)
            text = "%s %s" % (op, ", ".join(fmt(x) for x in allops))
        else:
            text = "%s %s" % (op, ", ".join([fmt(dst)] + [fmt(x) for x in srcs]))
        if op in ("s_movk_i32", "s_addk_i32", "s_mulk_i32"):
            lit = False
        self.ins.append(Ins(text, 8 if lit else 4, "salu", rd, wr))

    def sload(self, n, dst, base, off):
        op = {1: "s_load_dword", 2: "s_load_dwordx2", 4: "s_load_dwordx4", 8: "s_load_dwordx8", 16: "s_load_dwordx16"}[n]
        self.ins.append(Ins("%s %s, %s, 0x%x" % (op, dst, base, off), 8, "smem", regs_of(base), regs_of(dst)))

    def stamp(self, i):
        if not getattr(self, "diag", False):
            return
        self.raw("s_memrealtime s[96:97]", 8, "smem", wr=["s96", "s97"])
        self.raw("s_memtime s[98:99]", 8, "smem", wr=["s98", "s99"])
        self.raw("s_waitcnt lgkmcnt(0)", 4, "wait")
        self.lg = []
        self.raw("v_writelane_b32 %s, s96, %d" % (self.diagv, i), 8, "valu", rd=["s96"], wr=[self.diagv])
        self.raw("v_writelane_b32 %s, s98, %d" % (self.diagv, 16 + i), 8, "valu", rd=["s98"], wr=[self.diagv])

    def stamp_flush(self, kidx, ws_lo, ws_hi, tsoff, vtmp, vlane, wshift=9):
        if not getattr(self, "diag", False):
            return
        self.stamp(15)
        self.salu("s_add_u32", "s96", ws_lo, tsoff + kidx * 524288)
        self.salu("s_addc_u32", "s97", ws_hi, 0)
        self.salu("s_mov_b32", "s98", 524288)
        self.salu("s_mov_b32", "s99", 0x20000)
        self.valu("v_lshrrev_b32", vtmp, 6, "v0")
        self.valu("v_lshlrev_b32", vtmp, 7, vtmp)
        self.valu("v_lshl_add_u32", vtmp, vlane, 2, vtmp)
        self.salu("s_lshl_b32", "s100", "s2", 11)
        self.valu("v_mov_b32", "v0", 0x7f000000)
        self.valu("v_cmp_gt_u32", "vcc", 32, vlane)
        self.valu("v_cndmask_b32", vtmp, "v0", vtmp, "vcc")
        self.bstore("buffer_store_dword", self.diagv, vtmp, "s[96:99]", "s100")

    def nop(self, n=0):
        self.ins.append(Ins("s_nop %d" % n, 4, "nop", meta={"n": n + 1}))

    def barrier(self):
        self.raw("s_barrier", 4, "barrier")

    def branch(self, op, target):
        self.raw("%s %s" % (op, target), 4, "branch")

    def ds_read(self, op, dst, addr, offset=0, tag=None):
        assert 0 <= offset <= 65535, offset
        self.ins.append(Ins("%s %s, %s%s" % (op, dst, addr, (" offset:%d" % offset) if offset else ""), 8, "ds",
                            regs_of(addr), regs_of(dst), {"load": True}))
        self.lg.append(tag)

    def ds_write(self, op, addr, data, offset=0, tag=None):
        assert 0 <= offset <= 65535, offset
        self.ins.append(Ins("%s %s, %s%s" % (op, addr, data, (" offset:%d" % offset) if offset else ""), 8, "ds",
                            regs_of(addr) + regs_of(data), []))
        self.lg.append(tag)

    def _mub(self, voff, srd, soff, offset, flags):
        assert 0 <= offset <= 4095, offset
        return "%s, %s, %s offen%s%s" % (voff, srd, fmt(soff), (" offset:%d" % offset) if offset else "", (" " + flags) if flags else "")

    def bload(self, op, dst, voff, srd, soff=0, offset=0, flags="", tag=None):
        self.ins.append(Ins("%s %s, %s" % (op, dst, self._mub(voff, srd, soff, offset, flags)), 8, "vmem",
                            regs_of(voff) + regs_of(srd) + regs_of(soff), regs_of(dst), {"load": True}))
        self.vm.append(tag)

    def dma(self, voff, srd, soff=0, offset=0, flags="", tag=None):
        fl = (flags + " lds").strip()
        self.ins.append(Ins("buffer_load_dwordx4 %s" % self._mub(voff, srd, soff, offset, fl), 8, "vmem",
                            regs_of(voff) + regs_of(srd) + regs_of(soff) + ["m0"], [], {"dma": True}))
        self.vm.append(tag)

    def bstore(self, op, data, voff, srd, soff=0, offset=0, flags="", tag=None, ret=False):
        wide = op.endswith("x4") or op.endswith("x3")
        self.ins.append(Ins("%s %s, %s" % (op, data, self._mub(voff, srd, soff, offset, flags)), 8, "vmem",
                            regs_of(data) + regs_of(voff) + regs_of(srd) + regs_of(soff), regs_of(data) if ret else [],
                            {"widestore": set(regs_of(data)) if wide else None, "load": ret}))
        self.vm.append(tag)

    def wait(self, vm=None, lg=None):
        parts = []
        if vm is not None:
            vm = min(vm, 63)
            parts.append("vmcnt(%d)" % vm)
            if len(self.vm) > vm:
                self.vm = self.vm[len(self.vm) - vm:] if vm else []
        if lg is not None:
            lg = min(lg, 15)
            parts.append("lgkmcnt(%d)" % lg)
            if len(self.lg) > lg:
                self.lg = self.lg[len(self.lg) - lg:] if lg else []
        self.raw("s_waitcnt " + " ".join(parts), 4, "wait")

    def _need(self, lst, pred):
        last = -1
        for i, t in enumerate(lst):
            if pred(t):
                last = i
        return None if last < 0 else len(lst) - 1 - last

    def wait_tag(self, vm=None, lg=None):
        def mk(x):
            return x if callable(x) else (lambda t: t == x)
        nv = self._need(self.vm, mk(vm)) if vm is not None else None
        nl = self._need(self.lg, mk(lg)) if lg is not None else None
        if nv is None and nl is None:
            return
        self.wait(nv, nl)

    def hazards(self):
        out = []
        pos = 0
        lastw = {}
        mfma_c = []
        wstores = []

        def need(ins):
            req = 0
            k = ins.kind
            isvalu = k in ("valu", "trans", "dot", "permlane", "readlane")
            for r in ins.rd | ins.wr:
                if r not in lastw:
                    continue
                p, w = lastw[r]
                isrd = r in ins.rd
                d = 0
                if w.kind == "mfma":
                    ps = w.meta["pass"]
                    if k == "mfma":
                        if r in ins.meta["ab"]:
                            d = max(d, 8 if ps == 4 else 12)
                        if r in ins.meta["c"]:
                            if ins.meta["c"] == w.meta["d"] and ins.meta["pass"] == ps:
                                pass
                            else:
                                d = max(d, 6 if ps == 4 else 10)
                        if (not isrd) and ins.meta["d"] != w.meta["d"]:
                            d = max(d, 6 if ps == 4 else 10)
                    elif isvalu or k in ("ds", "vmem"):
                        d = max(d, 8 if ps == 4 else 12)
                elif w.kind in ("valu", "trans", "dot", "permlane", "readlane"):
                    if r[0] in "va" and r not in ("vcc",):
                        if k == "mfma" and isrd:
                            d = max(d, 2)
                        if w.kind == "trans" and isvalu and k != "trans" and isrd:
                            d = max(d, 1)
                        if w.kind == "trans" and k == "trans" and isrd:
                            d = max(d, 1)
                        if k == "readlane" and isrd:
                            d = max(d, 1)
                        if k == "permlane":
                            d = max(d, 2)
                        if w.kind == "dot":
                            same = k == "dot" and ins.meta.get("op") == w.meta.get("op") and r in ins.wr
                            if not same:
                                d = max(d, 3)
                    else:
                        if isvalu and isrd:
                            d = max(d, 2 if k != "readlane" else 4)
                        if k == "vmem" and isrd:
                            d = max(d, 5)
                        if k in ("salu", "branch", "smem") and isrd:
                            d = max(d, 2)
                elif w.kind == "salu":
                    if r == "m0" and ins.meta.get("dma"):
                        d = max(d, 1)
                if d:
                    req = max(req, p + d + 1)
            if isvalu:
                for p, regs, ps in mfma_c:
                    if ins.wr & regs:
                        req = max(req, p + (3 if ps == 4 else 7) + 1)
            for p, regs in wstores:
                if ins.wr & regs:
                    req = max(req, p + (2 if isvalu else 1) + 1)
            return req

        for ins in self.ins:
            if ins.kind in ("label", "comment"):
                out.append(ins)
                continue
            req = need(ins)
            if req > pos:
                n = req - pos
                while n > 0:
                    m = min(n, 16)
                    out.append(Ins("s_nop %d" % (m - 1), 4, "nop", meta={"n": m}))
                    pos += m
                    n -= m
            out.append(ins)
            for r in ins.wr:
                lastw[r] = (pos, ins)
            if ins.kind == "mfma" and ins.meta["c"]:
                mfma_c.append((pos, set(ins.meta["c"]), ins.meta["pass"]))
                mfma_c = mfma_c[-8:]
            if ins.meta.get("widestore"):
                wstores.append((pos, ins.meta["widestore"]))
                wstores = wstores[-4:]
            pos += ins.meta["n"] if ins.kind == "nop" else 1
        self.ins = out

    def align8(self, min_run=3):
        out = []
        off = 0
        n = len(self.ins)
        i = 0
        last4 = None
        while i < n:
            ins = self.ins[i]
            if ins.size == 8 and off % 8 == 4:
                run = 0
                j = i
                while j < n and self.ins[j].size in (0, 8):
                    run += 1 if self.ins[j].size == 8 else 0
                    j += 1
                if run >= 1 and last4 is not None and out[last4].widen:
                    out[last4].text = out[last4].widen
                    out[last4].size = 8
                    out[last4].widen = None
                    off += 4
                elif run >= min_run:
                    out.append(Ins("s_nop 0", 4, "nop", meta={"n": 1}))
                    off += 4
            out.append(ins)
            if ins.size == 4:
                last4 = len(out) - 1
            elif ins.size == 8:
                last4 = None
            off += ins.size
            i += 1
        self.ins = out
        return off

    def text(self):
        lines = []
        for ins in self.ins:
            if ins.kind == "label":
                lines.append(ins.text)
            else:
                lines.append("    " + ins.text)
        return "\n".join(lines) + "\n"

    def size(self):
        return sum(i.size for i in self.ins)
```

```python
import sys, json
from common import *
import importlib

HDR = open("sequential_preLN__linear_attn_block__swiglu_ffn__prompt.s.ref").read().split("; Override launch")[0]

def build(cfg):
    mods = cfg.get("mods", {})
    ks = [getattr(importlib.import_module(mods.get(n, n)), "gen_" + n)(cfg) for n in ("k1", "k2", "k3", "k4")]
    ks = [x if len(x) == 5 else x + (256,) for x in ks]
    out = HDR
    for k, nv, na, lds, blk in ks:
        out += "; @launch kernel=%s grid=(256,1,1) block=(%d,1,1) lds=%d\n" % (k.name, blk, lds)
    out += '.amdgcn_target "amdgcn-amd-amdhsa--gfx950"\n.text\n'
    for k, nv, na, lds, blk in ks:
        k.hazards()
        if cfg.get("align", 1):
            k.align8()
        out += ".globl %s\n.p2align 8\n.type %s,@function\n%s:\n" % (k.name, k.name, k.name)
        out += k.text()
        sys.stderr.write("%s: %d bytes, %d instrs\n" % (k.name, k.size(), sum(1 for i in k.ins if i.size)))
    out += ".p2align 8\nL_code_end:\n    s_endpgm\n"
    out += '.section .rodata,"a"\n'
    for k, nv, na, lds, blk in ks:
        out += descriptor(k.name, nv, na)
    return out

if __name__ == "__main__":
    cfg = json.loads(sys.argv[2]) if len(sys.argv) > 2 else {}
    open(sys.argv[1], "w").write(build(cfg))
```

```python
import struct
from emit import *


def f32(x):
    return struct.unpack("<I", struct.pack("<f", x))[0]


WS_PQ = 0x0
WS_H = 0x280000
WS_ACT = 0x500000
ACT_BYTES = 54 * 128 * 1024
WS_WOF = 0xC00000
WS_WGUF = 0xD00000
WS_WDF = 0x1200000
WDF_BYTES = 54 * 40 * 1024
WS_KV = 0x1500000
KV_BYTES = 32 * 420 * 4
WS_CS = 0x1510000
CS_BYTES = 108 * 32 * 4
WS_ST = WS_CS + 0x4000
WS_FL = WS_ST + 0x4000
ZERO_BYTES = 0x4000 + 2048 * 8
WS_TS = 0x1520000
WS_SIZE = 0x1800000
OOB = 0x7F000000

LOG2E = 1.4426950408889634
EPS6 = 1e-6
ONES_BF16 = 0x3F803F80


def srd(k, dst, lo, hi, size):
    k.salu("s_mov_b32", s(dst), lo)
    k.salu("s_mov_b32", s(dst + 1), hi)
    k.salu("s_mov_b32", s(dst + 2), size)
    k.salu("s_mov_b32", s(dst + 3), 0x20000)


def srd_off(k, dst, lo, hi, off, size):
    k.salu("s_add_u32", s(dst), lo, off)
    k.salu("s_addc_u32", s(dst + 1), hi, 0)
    k.salu("s_mov_b32", s(dst + 2), size)
    k.salu("s_mov_b32", s(dst + 3), 0x20000)


def divmagic(k, q, x, d, tmp_s, maxv):
    M = (65536 + d - 1) // d
    for t in range(maxv + 1):
        assert (t * M) >> 16 == t // d, (d, t)
    assert M < (1 << 24) and maxv * M < (1 << 32)
    k.valu("v_mul_u32_u24", q, M, x)
    k.valu("v_lshrrev_b32", q, 16, q)


def col_to_tile_slot(k, col, T, slot, t0, t1, t2):
    divmagic(k, T, col, 80, None, 639)
    k.valu("v_mul_u32_u24", t0, 80, T)
    k.valu("v_sub_u32", t0, col, t0)
    k.valu("v_mul_u32_u24", T, 5, T)
    k.valu("v_lshrrev_b32", t1, 5, t0)
    k.valu("v_lshlrev_b32", t1, 1, t1)
    k.valu("v_bfe_u32", t2, t0, 2, 1)
    k.valu("v_add_u32", t1, t1, t2)
    k.valu("v_bfe_u32", t2, t0, 3, 2)
    k.valu("v_lshlrev_b32", t2, 2, t2)
    k.valu("v_and_b32", slot, 3, t0)
    k.valu("v_add_u32", slot, slot, t2)
    k.valu("v_cmp_le_u32", "vcc", 64, t0)
    k.valu("v_cndmask_b32", t1, t1, 4, "vcc")
    k.valu("v_and_b32", t2, 15, t0)
    k.valu("v_cndmask_b32", slot, slot, t2, "vcc")
    k.valu("v_add_u32", T, T, t1)


def py_col_to_tile_slot(col):
    cb, c = divmod(col, 80)
    if c >= 64:
        return 5 * cb + 4, c - 64
    p, w = divmod(c, 32)
    return 5 * cb + 2 * p + ((w >> 2) & 1), 4 * (w >> 3) + (w & 3)


def bf16_round(k, dst, src, tmp=None):
    k.valu("v_cvt_pk_bf16_f32", dst, src, src)
    k.valu("v_lshlrev_b32", dst, 16, dst)


def xsum_g(k, x, t):
    k.valu("v_mov_b32", t, x)
    k.valu("v_permlane32_swap_b32", x, t)
    k.valu("v_add_f32", x, x, t)
    k.valu("v_mov_b32", t, x)
    k.valu("v_permlane16_swap_b32", x, t)
    k.valu("v_add_f32", x, x, t)


def xsum_g2(k, x, t, y, u):
    for op in ("v_permlane32_swap_b32", "v_permlane16_swap_b32"):
        k.valu("v_mov_b32", t, x)
        k.valu("v_mov_b32", u, y)
        k.valu(op, x, t)
        k.valu(op, y, u)
        k.valu("v_add_f32", x, x, t)
        k.valu("v_add_f32", y, y, u)


def ln_stats(k, sm, sq, mean_out, rstd_out, t0, sC):
    k.valu("v_mul_f32", sm, sC, sm)
    k.valu("v_mul_f32", sq, sC, sq)
    k.valu("v_fma_f32", sq, "-" + sm, sm, sq)
    k.valu("v_max_f32", sq, 0, sq)
    bf16_round(k, mean_out, sm)
    bf16_round(k, t0, sq)
    k.valu("v_add_f32", t0, f32(1e-5), t0)
    bf16_round(k, t0, t0)
    k.valu("v_sqrt_f32", t0, t0)
    bf16_round(k, t0, t0)
    k.valu("v_rcp_f32", rstd_out, t0)


def header(k, nwg):
    k.salu("s_cmp_ge_u32", "s2", nwg)
    k.branch("s_cbranch_scc1", "L_end_" + k.name)


def descriptor(name, nvgpr, nagpr, nsgpr=102):
    acc = (nvgpr + 3) // 4 * 4
    tot = acc + nagpr if nagpr else nvgpr
    return """.p2align 6
.amdhsa_kernel %s
  .amdhsa_next_free_vgpr %d
  .amdhsa_next_free_sgpr %d
  .amdhsa_accum_offset %d
  .amdhsa_group_segment_fixed_size 0
  .amdhsa_kernarg_size 80
  .amdhsa_user_sgpr_count 2
  .amdhsa_user_sgpr_kernarg_segment_ptr 1
  .amdhsa_system_sgpr_workgroup_id_x 1
.end_amdhsa_kernel
""" % (name, tot, nsgpr, acc)


def publish(k, name, S_WS, sWave, sOff, vA, vB, vLane):
    k.wait(vm=0, lg=0)
    k.barrier()
    k.salu("s_cmp_lg_u32", s(sWave), 0)
    k.branch("s_cbranch_scc1", "L_pub_" + name)
    k.valu("v_mov_b32", v(vA), OOB)
    k.valu("v_cmp_eq_u32", "vcc", 0, v(vLane))
    k.valu("v_cndmask_b32", v(vA), v(vA), 0, "vcc")
    k.valu("v_mov_b32", v(vB), 1)
    k.raw("buffer_store_dword %s, %s, %s, %s offen sc1" % (v(vB), v(vA), s(S_WS, 4), s(sOff)), 8, "vmem", rd=[v(vA), v(vB), s(sOff)])
    k.label("L_pub_" + name)


def await_flags(k, name, S_WS, sWave, sOff, sT, vA, vB, vLane):
    k.salu("s_cmp_lg_u32", s(sWave), 0)
    k.branch("s_cbranch_scc1", "L_aw_done_" + name)
    k.valu("v_and_b32", v(vA), 15, v(vLane))
    k.valu("v_lshlrev_b32", v(vA), 2, v(vA))
    k.label("L_aw_" + name)
    k.raw("buffer_load_dword %s, %s, %s, %s offen sc1" % (v(vB), v(vA), s(S_WS, 4), s(sOff)), 8, "vmem", rd=[v(vA), s(sOff)], wr=[v(vB)])
    k.raw("s_waitcnt vmcnt(0)", 4, "wait")
    k.valu("v_cmp_ne_u32", "vcc", 1, v(vB))
    k.nop(1)
    k.salu("s_cmp_eq_u64", "vcc", 0)
    k.branch("s_cbranch_scc1", "L_aw_done_" + name)
    k.raw("s_sleep 1", 4, "other")
    k.branch("s_branch", "L_aw_" + name)
    k.label("L_aw_done_" + name)
    k.barrier()
```

```python
import re


def v(n, c=1):
    return ("v%d" % n) if c == 1 else "v[%d:%d]" % (n, n + c - 1)


def a(n, c=1):
    return ("a%d" % n) if c == 1 else "a[%d:%d]" % (n, n + c - 1)


def s(n, c=1):
    return ("s%d" % n) if c == 1 else "s[%d:%d]" % (n, n + c - 1)


_REG = re.compile(r"^-?(?:abs\()?([vas])(?:(\d+)|\[(\d+):(\d+)\])\)?$")


def regs_of(op):
    if not isinstance(op, str):
        return []
    op = op.strip()
    if op in ("vcc", "exec", "m0", "scc"):
        return [op]
    if op in ("vcc_lo", "vcc_hi"):
        return ["vcc"]
    if op in ("exec_lo", "exec_hi"):
        return ["exec"]
    m = _REG.match(op)
    if not m:
        return []
    k = m.group(1)
    if m.group(2) is not None:
        return [k + m.group(2)]
    return [k + str(i) for i in range(int(m.group(3)), int(m.group(4)) + 1)]


INLINE_F = {"0.5", "-0.5", "1.0", "-1.0", "2.0", "-2.0", "4.0", "-4.0"}


def is_literal(op):
    if isinstance(op, int):
        return not (-16 <= op <= 64)
    if isinstance(op, float):
        return True
    if isinstance(op, str):
        if regs_of(op) or op in INLINE_F or op in ("off",):
            return False
        try:
            x = int(op, 0)
            return not (-16 <= x <= 64)
        except ValueError:
            return True
    return False


def fmt(op):
    if isinstance(op, int):
        return str(op) if -16 <= op <= 64 else ("0x%x" % (op & 0xFFFFFFFF))
    return str(op)


TRANS = ("v_exp_f32", "v_log_f32", "v_rcp_f32", "v_rsq_f32", "v_sqrt_f32", "v_sin_f32", "v_cos_f32")
VOP3_ONLY = (
    "v_fma_f32", "v_mad_u32_u24", "v_mul_lo_u32", "v_mul_hi_u32", "v_add3_u32", "v_lshl_add_u32", "v_add_lshl_u32",
    "v_and_or_b32", "v_bfe_u32", "v_lshl_or_b32", "v_perm_b32", "v_cvt_pk_bf16_f32", "v_med3_f32", "v_max3_f32",
    "v_pk_mul_f32", "v_pk_fma_f32", "v_pk_add_f32", "v_accvgpr_read_b32", "v_accvgpr_write_b32", "v_dot2_f32_bf16",
    "v_or3_b32", "v_xad_u32", "v_mbcnt_lo_u32_b32", "v_mbcnt_hi_u32_b32", "v_readlane_b32", "v_writelane_b32",
    "v_bfi_b32", "v_min3_f32", "v_mad_i32_i24", "v_pk_mov_b32",
)


class Ins:
    __slots__ = ("text", "size", "kind", "rd", "wr", "meta", "widen")

    def __init__(self, text, size, kind, rd=(), wr=(), meta=None, widen=None):
        self.text, self.size, self.kind = text, size, kind
        self.rd, self.wr = set(rd), set(wr)
        self.meta = meta or {}
        self.widen = widen


class K:
    def __init__(self, name):
        self.name = name
        self.ins = []
        self.vm = []
        self.lg = []

    def raw(self, text, size=4, kind="other", rd=(), wr=(), meta=None):
        self.ins.append(Ins(text, size, kind, rd, wr, meta))

    def label(self, name):
        self.ins.append(Ins(name + ":", 0, "label"))

    def comment(self, t):
        self.ins.append(Ins("; " + t, 0, "comment"))

    def valu(self, op, dst, *srcs, mods="", rmw=False, extra_rd=(), extra_wr=()):
        rd = []
        for x in srcs:
            rd += regs_of(x)
        wr = regs_of(dst)
        if rmw or op in ("v_fmac_f32", "v_dot2c_f32_bf16"):
            rd += wr
        rd += list(extra_rd)
        wr = wr + list(extra_wr)
        lit = any(is_literal(x) for x in srcs)
        e64 = op in VOP3_ONLY or mods != "" or any(isinstance(x, str) and (x.startswith("-v") or x.startswith("-s") or x.startswith("abs") or x.startswith("-a")) for x in srcs)
        if len(srcs) >= 2 and not e64 and not op.startswith("v_cmp") and op != "v_cndmask_b32":
            r1 = regs_of(srcs[1])
            if not r1 or r1[0][0] != "v" or r1[0] in ("vcc",):
                e64 = True
        if op.startswith("v_cmp"):
            if dst != "vcc":
                e64 = True
            r1 = regs_of(srcs[1])
            if not r1 or r1[0][0] != "v":
                e64 = True
        if op == "v_cndmask_b32":
            if srcs[2] != "vcc":
                e64 = True
            r1 = regs_of(srcs[1])
            if not r1 or r1[0][0] != "v":
                e64 = True
        if op in ("v_fmaak_f32", "v_fmamk_f32"):
            size = 8
        elif e64:
            assert not lit, "literal in VOP3: %s %s" % (op, srcs)
            size = 8
        else:
            size = 8 if lit else 4
        kind = "valu"
        if op in TRANS:
            kind = "trans"
        elif op.startswith("v_dot"):
            kind = "dot"
        elif op.startswith("v_permlane"):
            kind = "permlane"
            rd += wr + regs_of(srcs[0])
            wr = wr + regs_of(srcs[0])
        elif op in ("v_readfirstlane_b32", "v_readlane_b32"):
            kind = "readlane"
        body = ", ".join([fmt(dst)] + [fmt(x) for x in srcs])
        text = "%s %s%s" % (op, body, (" " + mods) if mods else "")
        widen = None
        if size == 4 and kind in ("valu", "trans") and op not in ("v_readfirstlane_b32",):
            widen = "%s_e64 %s" % (op, body)
        self.ins.append(Ins(text, size, kind, rd, wr, {"op": op}, widen))

    def mfma(self, shape, d, A, B, C):
        op = "v_mfma_f32_%s_bf16" % shape
        p = 4 if shape == "16x16x32" else 8
        rd = regs_of(A) + regs_of(B) + regs_of(C)
        self.ins.append(Ins("%s %s, %s, %s, %s" % (op, d, A, B, fmt(C)), 8, "mfma", rd, regs_of(d),
                            {"pass": p, "ab": set(regs_of(A) + regs_of(B)), "c": regs_of(C), "d": regs_of(d)}))

    def salu(self, op, dst, *srcs):
        rd = []
        for x in srcs:
            rd += regs_of(x)
        wr = regs_of(dst) if dst is not None else []
        lit = any(is_literal(x) for x in srcs)
        if op.startswith("s_cmp"):
            allops = [dst] + list(srcs)
            rd = []
            for x in allops:
                rd += regs_of(x)
            wr = ["scc"]
            lit = any(is_literal(x) for x in allops)
            text = "%s %s" % (op, ", ".join(fmt(x) for x in allops))
        else:
            text = "%s %s" % (op, ", ".join([fmt(dst)] + [fmt(x) for x in srcs]))
        if op in ("s_movk_i32", "s_addk_i32", "s_mulk_i32"):
            lit = False
        self.ins.append(Ins(text, 8 if lit else 4, "salu", rd, wr))

    def sload(self, n, dst, base, off):
        op = {1: "s_load_dword", 2: "s_load_dwordx2", 4: "s_load_dwordx4", 8: "s_load_dwordx8", 16: "s_load_dwordx16"}[n]
        self.ins.append(Ins("%s %s, %s, 0x%x" % (op, dst, base, off), 8, "smem", regs_of(base), regs_of(dst)))

    def stamp(self, i):
        if not getattr(self, "diag", False):
            return
        self.raw("s_memrealtime s[96:97]", 8, "smem", wr=["s96", "s97"])
        self.raw("s_memtime s[98:99]", 8, "smem", wr=["s98", "s99"])
        self.raw("s_waitcnt lgkmcnt(0)", 4, "wait")
        self.lg = []
        self.raw("v_writelane_b32 %s, s96, %d" % (self.diagv, i), 8, "valu", rd=["s96"], wr=[self.diagv])
        self.raw("v_writelane_b32 %s, s98, %d" % (self.diagv, 16 + i), 8, "valu", rd=["s98"], wr=[self.diagv])

    def stamp_flush(self, kidx, ws_lo, ws_hi, tsoff, vtmp, vlane, wshift=9):
        if not getattr(self, "diag", False):
            return
        self.stamp(15)
        self.salu("s_add_u32", "s96", ws_lo, tsoff + kidx * 524288)
        self.salu("s_addc_u32", "s97", ws_hi, 0)
        self.salu("s_mov_b32", "s98", 524288)
        self.salu("s_mov_b32", "s99", 0x20000)
        self.valu("v_lshrrev_b32", vtmp, 6, "v0")
        self.valu("v_lshlrev_b32", vtmp, 7, vtmp)
        self.valu("v_lshl_add_u32", vtmp, vlane, 2, vtmp)
        self.salu("s_lshl_b32", "s100", "s2", 11)
        self.salu("s_mov_b64", "exec", 0xFFFFFFFF)
        self.raw("buffer_store_dword %s, %s, s[96:99], s100 offen" % (self.diagv, vtmp), 8, "vmem", rd=[self.diagv, vtmp, "s96", "s97", "s98", "s99", "s100"])
        self.salu("s_mov_b64", "exec", -1)

    def nop(self, n=0):
        self.ins.append(Ins("s_nop %d" % n, 4, "nop", meta={"n": n + 1}))

    def barrier(self):
        self.raw("s_barrier", 4, "barrier")

    def branch(self, op, target):
        self.raw("%s %s" % (op, target), 4, "branch")

    def ds_read(self, op, dst, addr, offset=0, tag=None):
        assert 0 <= offset <= 65535, offset
        self.ins.append(Ins("%s %s, %s%s" % (op, dst, addr, (" offset:%d" % offset) if offset else ""), 8, "ds",
                            regs_of(addr), regs_of(dst), {"load": True}))
        self.lg.append(tag)

    def ds_write(self, op, addr, data, offset=0, tag=None):
        assert 0 <= offset <= 65535, offset
        self.ins.append(Ins("%s %s, %s%s" % (op, addr, data, (" offset:%d" % offset) if offset else ""), 8, "ds",
                            regs_of(addr) + regs_of(data), []))
        self.lg.append(tag)

    def _mub(self, voff, srd, soff, offset, flags):
        assert 0 <= offset <= 4095, offset
        return "%s, %s, %s offen%s%s" % (voff, srd, fmt(soff), (" offset:%d" % offset) if offset else "", (" " + flags) if flags else "")

    def bload(self, op, dst, voff, srd, soff=0, offset=0, flags="", tag=None):
        self.ins.append(Ins("%s %s, %s" % (op, dst, self._mub(voff, srd, soff, offset, flags)), 8, "vmem",
                            regs_of(voff) + regs_of(srd) + regs_of(soff), regs_of(dst), {"load": True}))
        self.vm.append(tag)

    def dma(self, voff, srd, soff=0, offset=0, flags="", tag=None):
        fl = (flags + " lds").strip()
        self.ins.append(Ins("buffer_load_dwordx4 %s" % self._mub(voff, srd, soff, offset, fl), 8, "vmem",
                            regs_of(voff) + regs_of(srd) + regs_of(soff) + ["m0"], [], {"dma": True}))
        self.vm.append(tag)

    def bstore(self, op, data, voff, srd, soff=0, offset=0, flags="", tag=None, ret=False):
        wide = op.endswith("x4") or op.endswith("x3")
        self.ins.append(Ins("%s %s, %s" % (op, data, self._mub(voff, srd, soff, offset, flags)), 8, "vmem",
                            regs_of(data) + regs_of(voff) + regs_of(srd) + regs_of(soff), regs_of(data) if ret else [],
                            {"widestore": set(regs_of(data)) if wide else None, "load": ret}))
        self.vm.append(tag)

    def wait(self, vm=None, lg=None):
        parts = []
        if vm is not None:
            vm = min(vm, 63)
            parts.append("vmcnt(%d)" % vm)
            if len(self.vm) > vm:
                self.vm = self.vm[len(self.vm) - vm:] if vm else []
        if lg is not None:
            lg = min(lg, 15)
            parts.append("lgkmcnt(%d)" % lg)
            if len(self.lg) > lg:
                self.lg = self.lg[len(self.lg) - lg:] if lg else []
        self.raw("s_waitcnt " + " ".join(parts), 4, "wait")

    def _need(self, lst, pred):
        last = -1
        for i, t in enumerate(lst):
            if pred(t):
                last = i
        return None if last < 0 else len(lst) - 1 - last

    def wait_tag(self, vm=None, lg=None):
        def mk(x):
            return x if callable(x) else (lambda t: t == x)
        nv = self._need(self.vm, mk(vm)) if vm is not None else None
        nl = self._need(self.lg, mk(lg)) if lg is not None else None
        if nv is None and nl is None:
            return
        self.wait(nv, nl)

    def hazards(self):
        out = []
        pos = 0
        lastw = {}
        mfma_c = []
        wstores = []

        def need(ins):
            req = 0
            k = ins.kind
            isvalu = k in ("valu", "trans", "dot", "permlane", "readlane")
            for r in ins.rd | ins.wr:
                if r not in lastw:
                    continue
                p, w = lastw[r]
                isrd = r in ins.rd
                d = 0
                if w.kind == "mfma":
                    ps = w.meta["pass"]
                    if k == "mfma":
                        if r in ins.meta["ab"]:
                            d = max(d, 8 if ps == 4 else 12)
                        if r in ins.meta["c"]:
                            if ins.meta["c"] == w.meta["d"] and ins.meta["pass"] == ps:
                                pass
                            else:
                                d = max(d, 6 if ps == 4 else 10)
                        if (not isrd) and ins.meta["d"] != w.meta["d"]:
                            d = max(d, 6 if ps == 4 else 10)
                    elif isvalu or k in ("ds", "vmem"):
                        d = max(d, 8 if ps == 4 else 12)
                elif w.kind in ("valu", "trans", "dot", "permlane", "readlane"):
                    if r[0] in "va" and r not in ("vcc",):
                        if k == "mfma" and isrd:
                            d = max(d, 2)
                        if w.kind == "trans" and isvalu and k != "trans" and isrd:
                            d = max(d, 1)
                        if w.kind == "trans" and k == "trans" and isrd:
                            d = max(d, 1)
                        if k == "readlane" and isrd:
                            d = max(d, 1)
                        if k == "permlane":
                            d = max(d, 2)
                        if w.kind == "dot":
                            same = k == "dot" and ins.meta.get("op") == w.meta.get("op") and r in ins.wr
                            if not same:
                                d = max(d, 3)
                    else:
                        if isvalu and isrd:
                            d = max(d, 2 if k != "readlane" else 4)
                        if k == "vmem" and isrd:
                            d = max(d, 5)
                        if k in ("salu", "branch", "smem") and isrd:
                            d = max(d, 2)
                elif w.kind == "salu":
                    if r == "m0" and ins.meta.get("dma"):
                        d = max(d, 1)
                if d:
                    req = max(req, p + d + 1)
            if isvalu:
                for p, regs, ps in mfma_c:
                    if ins.wr & regs:
                        req = max(req, p + (3 if ps == 4 else 7) + 1)
            for p, regs in wstores:
                if ins.wr & regs:
                    req = max(req, p + (2 if isvalu else 1) + 1)
            return req

        for ins in self.ins:
            if ins.kind in ("label", "comment"):
                out.append(ins)
                continue
            req = need(ins)
            if req > pos:
                n = req - pos
                while n > 0:
                    m = min(n, 16)
                    out.append(Ins("s_nop %d" % (m - 1), 4, "nop", meta={"n": m}))
                    pos += m
                    n -= m
            out.append(ins)
            for r in ins.wr:
                lastw[r] = (pos, ins)
            if ins.kind == "mfma" and ins.meta["c"]:
                mfma_c.append((pos, set(ins.meta["c"]), ins.meta["pass"]))
                mfma_c = mfma_c[-8:]
            if ins.meta.get("widestore"):
                wstores.append((pos, ins.meta["widestore"]))
                wstores = wstores[-4:]
            pos += ins.meta["n"] if ins.kind == "nop" else 1
        self.ins = out

    def align8(self, min_run=3):
        out = []
        off = 0
        n = len(self.ins)
        i = 0
        last4 = None
        while i < n:
            ins = self.ins[i]
            if ins.size == 8 and off % 8 == 4:
                run = 0
                j = i
                while j < n and self.ins[j].size in (0, 8):
                    run += 1 if self.ins[j].size == 8 else 0
                    j += 1
                if run >= 1 and last4 is not None and out[last4].widen:
                    out[last4].text = out[last4].widen
                    out[last4].size = 8
                    out[last4].widen = None
                    off += 4
                elif run >= min_run:
                    out.append(Ins("s_nop 0", 4, "nop", meta={"n": 1}))
                    off += 4
            out.append(ins)
            if ins.size == 4:
                last4 = len(out) - 1
            elif ins.size == 8:
                last4 = None
            off += ins.size
            i += 1
        self.ins = out
        return off

    def text(self):
        lines = []
        for ins in self.ins:
            if ins.kind == "label":
                lines.append(ins.text)
            else:
                lines.append("    " + ins.text)
        return "\n".join(lines) + "\n"

    def size(self):
        return sum(i.size for i in self.ins)
```

```python
from common import *

BOFF = 16384
SLOT = BOFF + 64 * 336
NSLOT = 4
SCR = NSLOT * SLOT
K1_LDS = 163840
KVP = 168
KVT = 128 * KVP
KVL = SCR + 2048


def gen_k1(cfg):
    k = K("k1_kernel")
    S_X, S_W, S_WS, S_DBG, S_CODE, S_A, S_B = 4, 8, 12, 16, 20, 24, 28
    sWave, sRb, sCg, sA, sB, sT0, sT1, sWm, sWn, sLA, sLB, sRole, sJJ, sXcd = range(52, 66)
    sRot, sKVo, sC640, sOld, sFlagOff, sCnt, sQ0, sQ1, sKV1, sT2 = range(66, 76)
    sMask = 76
    sAq, sBq0, sBq1 = 86, 87, 88
    sLw = 89
    vLane, vG, vS = 1, 2, 3
    vX = 4
    vWb = 8
    vKA = 12
    vQ = 16
    vAa, vB0a, vB1a, vO0, vO1 = 16, 17, 18, 19, 20
    vStW, vStR, vCsW, vCsR = 21, 22, 23, 24
    vFlag, vOld = 25, 26
    vPk = 36
    vOnes = 28
    vE, vL = 32, 34
    vM = [40, 42, 44, 46]
    ACC = 48
    CSL = 128
    RS = 148
    XF = 164
    WF = 196
    WC = 236
    NV = 240
    vT = XF
    CS = [CSL + 4 * i for i in range(5)]

    def acc(ap, b):
        return ACC + (ap * 5 + b) * 4

    header(k, 256)
    k.diag = cfg.get("diag", False); k.diagv = "v39"
    if k.diag:
        k.valu("v_mov_b32", k.diagv, 0)
    k.stamp(0)
    k.sload(16, s(32, 16), "s[0:1]", 0)
    k.sload(4, s(48, 4), "s[0:1]", 64)
    k.raw("s_getpc_b64 s[90:91]", 4, "salu", wr=["s90", "s91"])
    k.label("L_pc_k1")
    k.valu("v_and_b32", v(vLane), 63, "v0")
    k.valu("v_lshrrev_b32", v(vT), 6, "v0")
    k.valu("v_readfirstlane_b32", s(sWave), v(vT))
    k.valu("v_lshrrev_b32", v(vG), 4, v(vLane))
    k.valu("v_and_b32", v(vS), 15, v(vLane))
    k.salu("s_and_b32", s(sXcd), "s2", 7)
    k.salu("s_lshr_b32", s(sJJ), "s2", 3)
    k.salu("s_sub_u32", s(S_CODE), "s90", "(L_pc_k1-k1_kernel)")
    k.salu("s_subb_u32", s(S_CODE + 1), "s91", 0)
    k.salu("s_mov_b32", s(S_CODE + 2), "(L_code_end-k1_kernel)")
    k.salu("s_mov_b32", s(S_CODE + 3), 0x20000)
    k.salu("s_cmp_ge_u32", s(sJJ), 24)
    k.branch("s_cbranch_scc1", "L_k1_rt")
    k.salu("s_cmp_ge_u32", s(sJJ), 16)
    k.salu("s_cselect_b32", s(sRole), 1, 0)
    k.salu("s_lshr_b32", s(sRb), s(sXcd), 1)
    k.salu("s_lshl_b32", s(sRb), s(sRb), 2)
    k.salu("s_and_b32", s(sT2), s(sXcd), 1)
    k.salu("s_lshr_b32", s(sT0), s(sJJ), 2)
    k.salu("s_and_b32", s(sT1), s(sJJ), 3)
    k.salu("s_lshl_b32", s(sCg), s(sT2), 2)
    k.salu("s_add_u32", s(sCg), s(sCg), s(sT1))
    k.salu("s_and_b32", s(sA), s(sJJ), 7)
    k.salu("s_lshr_b32", s(sA), s(sA), 1)
    k.salu("s_and_b32", s(sB), s(sJJ), 1)
    k.salu("s_lshl_b32", s(sT1), s(sT2), 1)
    k.salu("s_add_u32", s(sB), s(sB), s(sT1))
    k.salu("s_cmp_eq_u32", s(sRole), 1)
    k.salu("s_cselect_b32", s(sT0), s(sA), s(sT0))
    k.salu("s_cselect_b32", s(sCg), s(sB), s(sCg))
    k.salu("s_add_u32", s(sRb), s(sRb), s(sT0))
    k.valu("v_mov_b32", v(vT), OOB)
    k.valu("v_cmp_eq_u32", "vcc", 0, v(vLane))
    k.valu("v_cndmask_b32", v(vFlag), v(vT), 0, "vcc")
    k.salu("s_lshl_b32", s(sCnt), s(sCg), 3)
    k.salu("s_add_u32", s(sFlagOff), s(sCnt), 4)
    k.salu("s_cmp_lt_u32", s(sWave), 4)
    k.branch("s_cbranch_scc1", "L_k1_comp")

    vDA, vDB, vZero = 48, 52, 60
    k.salu("s_sub_u32", s(sLw), s(sWave), 4)
    k.valu("v_lshrrev_b32", v(vT), 3, v(vLane))
    k.valu("v_mul_u32_u24", v(vT), 1280, v(vT))
    k.valu("v_and_b32", v(vT + 1), 7, v(vLane))
    k.valu("v_xor_b32", v(vT + 1), v(vT + 1), v(vG))
    k.valu("v_xor_b32", v(vT + 2), 4, v(vT + 1))
    k.valu("v_lshl_add_u32", v(vT + 3), v(vT + 1), 4, v(vT))
    k.valu("v_lshl_add_u32", v(vT + 4), v(vT + 2), 4, v(vT))
    k.salu("s_mul_i32", s(sT0), s(sLw), 4 * 8 * 1280)
    for q in range(4):
        k.valu("v_add_u32", v(vDA + q), s(sT0), v(vT + 3 + (q & 1)))
        if q < 3:
            k.salu("s_add_u32", s(sT0), s(sT0), 8 * 1280)
    k.salu("s_mul_i32", s(sA), s(sRb), 128 * 1280)
    k.salu("s_mul_i32", s(sB), s(sCg), 160)
    k.salu("s_lshl_b32", s(sB), s(sB), s(sRole))
    k.salu("s_lshl_b32", s(sT0), s(sCg), s(sRole))
    k.salu("s_add_u32", s(sT0), s(sT0), s(sRb))
    k.salu("s_and_b32", s(sT0), s(sT0), 3)
    k.salu("s_lshl_b32", s(sT0), s(sT0), 3)
    k.salu("s_lshr_b32", s(sRot), cfg.get("k1_rot", 0), s(sT0))
    k.salu("s_and_b32", s(sRot), s(sRot), 15)
    k.salu("s_lshl_b32", s(sT0), s(sRot), 7)
    k.salu("s_add_u32", s(sA), s(sA), s(sT0))
    k.salu("s_mul_i32", s(sT0), s(sRot), 64 * 3840)
    k.salu("s_add_u32", s(sB), s(sB), s(sT0))
    k.salu("s_lshl_b32", s(sLA), s(sLw), 12)
    k.salu("s_lshl_b32", s(sLB), s(sLw), 10)
    k.salu("s_add_u32", s(sLB), s(sLB), BOFF)
    for sl in range(NSLOT):
        k.salu("s_add_u32", s(S_A + sl), s(sLB), sl * SLOT + 5 * 4096)
        k.salu("s_cmp_ge_u32", s(sLw), 1)
        k.salu("s_cselect_b32", s(S_A + sl), 0x30000, s(S_A + sl))
    k.wait(lg=0)
    srd(k, S_X, "s32", "s33", 2621440)
    srd(k, S_W, "s34", "s35", 2457600)

    def issue_a(t):
        slot = (t % NSLOT) * SLOT
        for q in range(4):
            k.salu("s_add_u32", "m0", s(sLA), slot + q * 1024)
            k.dma(v(vDA + q), s(S_X, 4), s(sA), tag=("st", t))

    def issue_b(t):
        slot = (t % NSLOT) * SLOT
        for q in range(5):
            k.salu("s_add_u32", "m0", s(sLB), slot + q * 4096)
            k.dma(v(vDB + q), s(S_W, 4), s(sB), tag=("st", t))
        k.salu("s_mov_b32", "m0", s(S_A + t % NSLOT))
        k.dma(v(vDB + 5), s(S_W, 4), s(sB), tag=("st", t))
        k.salu("s_add_u32", s(sA), s(sA), 128)
        k.salu("s_add_u32", s(sB), s(sB), 64 * 3840)
        k.salu("s_add_u32", s(sRot), s(sRot), 1)
        k.salu("s_cmp_eq_u32", s(sRot), 10)
        k.salu("s_cselect_b32", s(sT2), 1280, 0)
        k.salu("s_cselect_b32", s(sT1), 640 * 3840, 0)
        k.salu("s_sub_u32", s(sA), s(sA), s(sT2))
        k.salu("s_sub_u32", s(sB), s(sB), s(sT1))

    issue_a(0)
    k.salu("s_cmp_eq_u32", s(sRole), 1)
    k.salu("s_cselect_b64", s(sMask, 2), -1, 0)
    k.salu("s_lshl_b32", s(sT0), s(sLw), 6)
    for i in range(1, 6):
        k.valu("v_mov_b32", v(vDB + i), 0)
    k.valu("v_mov_b32", v(vT + 7), OOB)
    k.label("L_k1_wl")
    k.valu("v_add_u32", v(vT), s(sT0), v(vLane))
    divmagic(k, v(vT + 1), v(vT), 21, None, 1535)
    k.valu("v_mul_u32_u24", v(vT + 2), 21, v(vT + 1))
    k.valu("v_sub_u32", v(vT + 2), v(vT), v(vT + 2))
    k.valu("v_and_b32", v(vT + 3), 32, v(vT + 1))
    k.valu("v_bfe_u32", v(vT + 4), v(vT + 1), 3, 2)
    k.valu("v_lshl_add_u32", v(vT + 3), v(vT + 4), 3, v(vT + 3))
    k.valu("v_and_b32", v(vT + 4), 1, v(vT + 1))
    k.valu("v_lshl_add_u32", v(vT + 3), v(vT + 4), 2, v(vT + 3))
    k.valu("v_bfe_u32", v(vT + 4), v(vT + 1), 1, 2)
    k.valu("v_add_u32", v(vT + 3), v(vT + 3), v(vT + 4))
    k.valu("v_mul_u32_u24", v(vT + 3), 3840, v(vT + 3))
    divmagic(k, v(vT + 4), v(vT + 2), 5, None, 31)
    k.valu("v_and_b32", v(vT + 5), 1, v(vT + 4))
    k.valu("v_mul_u32_u24", v(vT + 5), 1200, v(vT + 5))
    k.valu("v_lshrrev_b32", v(vT + 6), 1, v(vT + 4))
    k.valu("v_mul_u32_u24", v(vT + 6), 80, v(vT + 6))
    k.valu("v_sub_u32", v(vT + 5), v(vT + 5), v(vT + 6))
    k.valu("v_add_u32", v(vT + 5), 1280, v(vT + 5))
    k.valu("v_cndmask_b32", v(vT + 5), v(vT + 5), 0, s(sMask, 2))
    k.valu("v_lshl_add_u32", v(vT + 3), v(vT + 2), 4, v(vT + 3))
    k.valu("v_add_u32", v(vT + 3), v(vT + 3), v(vT + 5))
    k.valu("v_cmp_eq_u32", "vcc", 20, v(vT + 2))
    k.valu("v_cmp_le_u32", s(sMask + 2, 2), 64, v(vT + 1))
    for i in range(5):
        k.valu("v_mov_b32", v(vDB + i), v(vDB + i + 1))
    k.salu("s_or_b64", "vcc", "vcc", s(sMask + 2, 2))
    k.valu("v_cndmask_b32", v(vDB + 5), v(vT + 3), v(vT + 7), "vcc")
    k.salu("s_add_u32", s(sT0), s(sT0), 256)
    k.salu("s_cmp_lt_u32", s(sT0), 1536)
    k.branch("s_cbranch_scc1", "L_k1_wl")
    issue_b(0)
    srd(k, S_DBG, "s48", "s49", 256)
    srd(k, S_WS, "s50", "s51", WS_SIZE)
    k.valu("v_mov_b32", v(vOld), 1)
    k.salu("s_or_b32", s(sT0), s(sRole), s(sLw))
    k.salu("s_cmp_lg_u32", s(sT0), 0)
    k.branch("s_cbranch_scc1", "L_k1_noat")
    k.raw("buffer_atomic_add %s, %s, %s, %s offen sc0" % (v(vOld), v(vFlag), s(S_DBG, 4), s(sCnt)), 8, "vmem",
          rd=[v(vOld), v(vFlag), s(sCnt)] + regs_of(s(S_DBG, 4)), wr=[v(vOld)])
    k.label("L_k1_noat")
    LPRE = cfg.get("k1_pre", 2)
    for t in range(1, LPRE):
        issue_a(t)
        issue_b(t)
    k.stamp(1)
    for i in range(4):
        k.valu("v_mov_b32", v(vZero + i), 0)
    k.valu("v_lshlrev_b32", v(vT), 4, v(vLane))
    k.valu("v_cmp_gt_u32", "vcc", 36, v(vLane))
    k.valu("v_cndmask_b32", v(vT + 1), v(vT + 7), v(vT), "vcc")
    k.salu("s_mul_i32", s(sKVo), s(sCg), 6720)
    k.salu("s_add_u32", s(sKVo), s(sKVo), WS_KV)
    k.salu("s_add_u32", s(sKV1), s(sKVo), 4096)
    nxt = LPRE
    for t in range(10):
        k.wait_tag(vm=("st", t))
        k.barrier()
        if t == 1:
            zst = nxt
            k.valu("v_readfirstlane_b32", s(sOld), v(vOld))
            k.salu("s_cmp_lg_u32", s(sOld), 0)
            k.branch("s_cbranch_scc1", "L_k1_noz")
            for i in range(7):
                k.raw("buffer_store_dwordx4 %s, %s, %s, %s offen offset:%d sc0 sc1" % (
                    v(vZero, 4), v(vT + 1 if i == 6 else vT), s(S_WS, 4), s(sKVo if i < 4 else sKV1), (i % 4) * 1024), 8, "vmem",
                    rd=regs_of(v(vZero, 4)) + [v(vT), v(vT + 1), s(sKVo), s(sKV1)])
            k.label("L_k1_noz")
        if t > 1 and t == zst:
            k.salu("s_cmp_lg_u32", s(sOld), 0)
            k.branch("s_cbranch_scc1", "L_k1_nof")
            k.valu("v_mov_b32", v(vT + 2), 1)
            k.raw("buffer_store_dword %s, %s, %s, %s offen sc0 sc1" % (v(vT + 2), v(vFlag), s(S_DBG, 4), s(sFlagOff)), 8, "vmem",
                  rd=[v(vT + 2), v(vFlag), s(sFlagOff)])
            k.label("L_k1_nof")
        if t == 7:
            assert nxt == 10
            sU, sCb, sO = 76, 77, 78
            vRt, vRa, vRs, R0 = 64, 65, 66, 72
            k.salu("s_lshl_b32", s(sU), "s2", 2)
            k.salu("s_add_u32", s(sU), s(sU), s(sLw))
            k.salu("s_mul_i32", s(sCb), s(sU), 911)
            k.salu("s_lshr_b32", s(sCb), s(sCb), 16)
            k.salu("s_mul_i32", s(sT0), s(sCb), 72)
            k.salu("s_sub_u32", s(sO), s(sU), s(sT0))
            k.salu("s_mul_i32", s(sO), s(sO), 3)
            srd(k, S_X, "s44", "s45", 2211840)
            k.salu("s_mul_i32", s(sT0), s(sO), 8 * 1280)
            k.salu("s_lshl_b32", s(sT1), s(sCb), 7)
            k.salu("s_add_u32", s(sT0), s(sT0), s(sT1))
            k.salu("s_cmp_ge_u32", s(sU), 720)
            k.salu("s_cselect_b32", s(sT0), OOB, s(sT0))
            k.valu("v_lshrrev_b32", v(vRt), 3, v(vLane))
            k.valu("v_mul_u32_u24", v(vRt), 1280, v(vRt))
            k.valu("v_and_b32", v(vRa), 7, v(vLane))
            k.valu("v_lshl_add_u32", v(vRt), v(vRa), 4, v(vRt))
            for o in range(3):
                k.salu("s_add_u32", "m0", s(sLA), 2 * SLOT + o * 1024)
                k.dma(v(vRt), s(S_X, 4), s(sT0), tag="rt")
                k.salu("s_add_u32", s(sT0), s(sT0), 8 * 1280)
            k.valu("v_bfe_u32", v(vRa), v(vLane), 2, 2)
            k.valu("v_lshlrev_b32", v(vRa), 7, v(vRa))
            k.valu("v_lshl_add_u32", v(vRa), v(vG), 5, v(vRa))
            k.valu("v_and_b32", v(vT + 3), 3, v(vLane))
            k.valu("v_lshl_add_u32", v(vRa), v(vT + 3), 3, v(vRa))
            k.salu("s_add_u32", s(sT0), s(sLA), 2 * SLOT)
            k.valu("v_add_u32", v(vRa), s(sT0), v(vRa))
            k.salu("s_lshl_b32", s(sT0), s(sCb), 6)
            k.valu("v_add_u32", v(vT + 3), s(sT0), v(vLane))
            k.valu("v_min_u32", v(vT + 3), 639, v(vT + 3))
            col_to_tile_slot(k, v(vT + 3), v(vRs), v(vT + 4), v(vT + 5), v(vT + 6), v(vT + 8))
            k.valu("v_lshlrev_b32", v(vRs), 10, v(vRs))
            k.valu("v_lshl_add_u32", v(vRs), v(vT + 4), 4, v(vRs))
        n_iss = 2 if (nxt < t + 3 and t >= cfg.get("k1_catch", 0)) else 1
        for _ in range(n_iss):
            if nxt < 10 and nxt <= t + 3:
                issue_a(nxt)
                issue_b(nxt)
                nxt += 1
    k.wait_tag(vm="rt")
    for o in range(3):
        for u in range(2):
            k.ds_read("ds_read_b64_tr_b16", v(R0 + 4 * o + 2 * u, 2), v(vRa), o * 1024 + u * 512, tag=("rr", o))
    for o in range(3):
        k.salu("s_add_u32", s(sT0), s(sO), o)
        k.salu("s_lshr_b32", s(sT1), s(sT0), 2)
        k.salu("s_mul_i32", s(sT1), s(sT1), 40960)
        k.salu("s_and_b32", s(sT0), s(sT0), 3)
        k.salu("s_lshl_b32", s(sT0), s(sT0), 8)
        k.salu("s_add_u32", s(sT1), s(sT1), s(sT0))
        k.salu("s_add_u32", s(sT1), s(sT1), WS_WDF)
        k.salu("s_cmp_ge_u32", s(sU), 720)
        k.salu("s_cselect_b32", s(sT1), OOB, s(sT1))
        k.wait_tag(lg=("rr", o))
        k.bstore("buffer_store_dwordx4", v(R0 + 4 * o, 4), v(vRs), s(S_WS, 4), s(sT1), flags=cfg.get("rt_st", "sc1"), tag="rs")
    k.branch("s_branch", "L_k1_fin")

    k.label("L_k1_comp")
    k.vm, k.lg = [], []
    k.salu("s_lshl_b32", s(sT0), s(sJJ), 2)
    k.salu("s_add_u32", s(sT0), s(sT0), s(sWave))
    k.salu("s_and_b32", s(sT0), s(sT0), 31)
    k.salu("s_mul_i32", s(sT0), s(sT0), 640)
    k.valu("v_lshlrev_b32", v(vT), 4, v(vLane))
    k.bload("buffer_load_dwordx4", v(ACC, 4), v(vT), s(S_CODE, 4), s(sT0), tag="pre")
    k.salu("s_lshr_b32", s(sWm), s(sWave), 1)
    k.salu("s_and_b32", s(sWn), s(sWave), 1)
    k.valu("v_lshrrev_b32", v(vT), 1, v(vS))
    k.valu("v_xor_b32", v(vT), v(vT), v(vG))
    k.valu("v_lshlrev_b32", v(vT), 4, v(vT))
    k.valu("v_lshl_add_u32", v(vT), v(vS), 7, v(vT))
    k.valu("v_xor_b32", v(vT + 1), 64, v(vT))
    k.salu("s_lshl_b32", s(sT0), s(sWm), 13)
    k.salu("s_lshl_b32", s(sT1), s(sWn), 12)
    k.salu("s_add_u32", s(sT2), s(sT0), s(sT1))
    k.salu("s_xor_b32", s(sT1), s(sT1), 4096)
    k.salu("s_add_u32", s(sT0), s(sT0), s(sT1))
    k.valu("v_add_u32", v(vX + 0), s(sT2), v(vT))
    k.valu("v_add_u32", v(vX + 1), s(sT0), v(vT))
    k.valu("v_add_u32", v(vX + 2), s(sT2), v(vT + 1))
    k.valu("v_add_u32", v(vX + 3), s(sT0), v(vT + 1))
    k.valu("v_bfe_u32", v(vT), v(vLane), 2, 2)
    k.valu("v_lshlrev_b32", v(vT), 1, v(vT))
    k.valu("v_lshl_add_u32", v(vT), v(vG), 3, v(vT))
    k.valu("v_mul_u32_u24", v(vT), 336, v(vT))
    k.valu("v_and_b32", v(vT + 1), 3, v(vLane))
    k.valu("v_lshl_add_u32", v(vT), v(vT + 1), 3, v(vT))
    k.salu("s_mul_i32", s(sT0), s(sWn), 160)
    k.salu("s_add_u32", s(sT0), s(sT0), BOFF)
    k.valu("v_add_u32", v(vWb + 2), s(sT0), v(vT))
    k.salu("s_lshl_b32", s(sT1), s(sWm), 6)
    k.valu("v_add_u32", v(vWb), s(sT1), v(vWb + 2))
    k.salu("s_xor_b32", s(sT1), s(sT1), 64)
    k.valu("v_add_u32", v(vWb + 1), s(sT1), v(vWb + 2))
    for i in range(4):
        k.valu("v_mov_b32", v(vOnes + i), ONES_BF16)
    k.salu("s_mov_b32", s(sC640), f32(1.0 / 640))
    k.valu("v_mov_b32", v(vE), f32(EPS6))
    k.valu("v_mov_b32", v(vE + 1), f32(-EPS6 * LOG2E))
    k.valu("v_mov_b32", v(vL), f32(LOG2E))
    k.valu("v_mov_b32", v(vL + 1), 0)
    STAT, CSX = SCR, SCR + 1024
    k.salu("s_lshl_b32", s(sT0), s(sWm), 9)
    k.salu("s_lshl_b32", s(sT1), s(sWn), 8)
    k.salu("s_add_u32", s(sT2), s(sT0), s(sT1))
    k.salu("s_xor_b32", s(sT1), s(sT1), 256)
    k.salu("s_add_u32", s(sT0), s(sT0), s(sT1))
    k.salu("s_add_u32", s(sT2), s(sT2), STAT)
    k.salu("s_add_u32", s(sT0), s(sT0), STAT)
    k.valu("v_lshlrev_b32", v(vT), 3, v(vS))
    k.valu("v_add_u32", v(vStW), s(sT2), v(vT))
    k.valu("v_add_u32", v(vStR), s(sT0), v(vT))
    k.salu("s_lshl_b32", s(sT0), s(sWn), 8)
    k.salu("s_add_u32", s(sT0), s(sT0), CSX)
    k.salu("s_lshl_b32", s(sT1), s(sWm), 7)
    k.salu("s_add_u32", s(sT2), s(sT0), s(sT1))
    k.salu("s_xor_b32", s(sT1), s(sT1), 128)
    k.salu("s_add_u32", s(sT0), s(sT0), s(sT1))
    k.valu("v_lshlrev_b32", v(vT), 4, v(vG))
    k.valu("v_add_u32", v(vCsW), s(sT2), v(vT))
    k.valu("v_add_u32", v(vCsR), s(sT0), v(vT))
    k.valu("v_and_b32", v(vT), 3, v(vS))
    k.valu("v_lshrrev_b32", v(vT + 1), 2, v(vS))
    k.valu("v_cmp_eq_u32", s(sMask, 2), 1, v(vT))
    k.valu("v_cmp_eq_u32", s(sMask + 2, 2), 2, v(vT))
    k.valu("v_cmp_eq_u32", s(sMask + 4, 2), 3, v(vT))
    k.valu("v_cmp_eq_u32", s(sMask + 6, 2), v(vT + 1), v(vG))
    k.valu("v_cmp_gt_u32", s(sMask + 8, 2), 2, v(vG))
    k.wait(lg=0)
    srd(k, S_DBG, "s48", "s49", 256)
    srd(k, S_WS, "s50", "s51", WS_SIZE)
    k.salu("s_cmp_eq_u32", s(sRole), 1)
    k.branch("s_cbranch_scc1", "L_k1_setq")
    k.valu("v_mul_u32_u24", v(vT), KVP, v(vS))
    k.salu("s_mul_i32", s(sT0), s(sWm), 64 * KVP)
    k.salu("s_mul_i32", s(sT1), s(sWn), KVT + 32 * KVP)
    k.salu("s_add_u32", s(sT2), s(sT0), s(sT1))
    k.salu("s_mul_i32", s(sT1), s(sWn), KVT - 32 * KVP)
    k.salu("s_add_u32", s(sT0), s(sT0), s(sT1))
    k.salu("s_add_u32", s(sT0), s(sT0), 32 * KVP)
    k.valu("v_add_u32", v(vKA + 2), s(sT2), v(vT))
    k.valu("v_add_u32", v(vKA + 3), s(sT0), v(vT))
    k.valu("v_lshl_add_u32", v(vKA), v(vG), 3, v(vKA + 2))
    k.valu("v_lshl_add_u32", v(vKA + 1), v(vG), 3, v(vKA + 3))

    def enc(qs):
        return qs[0] | qs[1] << 8 | qs[2] << 16 | qs[3] << 24
    A1h0, A1h1, A2 = enc([10, 11, 12, 13]), enc([15, 16, 17, 18]), enc([14, 19, 20, 20])
    B1h0, B1h1, B2 = enc([0, 1, 2, 3]), enc([5, 6, 7, 8]), enc([4, 9, 4, 9])
    k.salu("s_and_b32", s(sT2), s(sWave), 3)
    k.salu("s_mov_b32", s(sAq), A2)
    k.salu("s_mov_b32", s(sBq0), B2)
    k.salu("s_mov_b32", s(sBq1), B2)
    k.salu("s_cmp_eq_u32", s(sT2), 0)
    k.salu("s_cselect_b32", s(sAq), A1h0, s(sAq))
    k.salu("s_cselect_b32", s(sBq0), B1h0, s(sBq0))
    k.salu("s_cmp_eq_u32", s(sT2), 1)
    k.salu("s_cselect_b32", s(sAq), A1h1, s(sAq))
    k.salu("s_cselect_b32", s(sBq0), B1h1, s(sBq0))
    k.salu("s_cmp_eq_u32", s(sT2), 2)
    k.salu("s_cselect_b32", s(sBq0), B1h0, s(sBq0))
    k.salu("s_cselect_b32", s(sBq1), B1h1, s(sBq1))
    vK = vT
    k.valu("v_and_b32", v(vK), 1, v(vG))
    k.valu("v_bfe_u32", v(vK + 1), v(vLane), 2, 2)
    k.valu("v_lshl_add_u32", v(vK), v(vK), 2, v(vK + 1))
    k.valu("v_lshrrev_b32", v(vK + 1), 1, v(vG))
    k.valu("v_lshl_add_u32", v(vK), v(vK), 2, v(vK + 1))
    k.valu("v_mul_u32_u24", v(vK), KVP, v(vK))
    k.valu("v_and_b32", v(vK + 1), 3, v(vLane))
    k.valu("v_lshlrev_b32", v(vK + 1), 3, v(vK + 1))
    for dst, tb in ((vAa, sAq), (vB0a, sBq0), (vB1a, sBq1)):
        k.valu("v_bfe_u32", v(dst), s(tb), v(vK + 1), 8)
        k.valu("v_lshl_add_u32", v(dst), v(dst), 3, v(vK))
    k.salu("s_mul_i32", s(sKVo), s(sCg), 6720)
    k.salu("s_add_u32", s(sKVo), s(sKVo), WS_KV)
    k.salu("s_cmp_eq_u32", s(sT2), 3)
    k.salu("s_cselect_b32", s(sKV1), OOB, s(sKVo))
    k.valu("v_lshlrev_b32", v(vK + 7), 3, v(vG))
    k.valu("v_bfe_u32", v(vK + 7), s(sAq), v(vK + 7), 8)
    k.valu("v_subrev_u32", v(vK + 7), 10, v(vK + 7))
    k.valu("v_lshrrev_b32", v(vK + 8), 2, v(vS))
    k.valu("v_lshlrev_b32", v(vK + 8), 3, v(vK + 8))
    sE = 92
    for dst, tb in ((vO0, sBq0), (vO1, sBq1)):
        k.valu("v_bfe_u32", v(vK + 9), s(tb), v(vK + 8), 8)
        k.valu("v_cmp_le_u32", "vcc", 5, v(vK + 9))
        k.valu("v_cndmask_b32", v(vK + 10), 0, 1, "vcc")
        k.valu("v_mul_u32_u24", v(vK + 11), 5, v(vK + 10))
        k.valu("v_sub_u32", v(vK + 9), v(vK + 9), v(vK + 11))
        k.valu("v_sub_u32", v(vK + 11), v(vK + 7), v(vK + 11))
        k.valu("v_cmp_eq_u32", "vcc", 10, v(vK + 7))
        k.valu("v_cndmask_b32", v(vK + 11), v(vK + 11), 5, "vcc")
        k.valu("v_cmp_eq_u32", s(sE, 2), 5, v(vK + 7))
        k.valu("v_cmp_eq_u32", "vcc", 0, v(vK + 10))
        k.salu("s_and_b64", s(sE, 2), s(sE, 2), "vcc")
        k.valu("v_cndmask_b32", v(vK + 11), v(vK + 11), 63, s(sE, 2))
        k.valu("v_mul_u32_u24", v(dst), 21, v(vK + 10))
        k.valu("v_lshl_add_u32", v(dst), v(vK + 11), 2, v(dst))
        k.valu("v_mul_u32_u24", v(dst), 20, v(dst))
        k.valu("v_lshl_add_u32", v(dst), v(vK + 9), 2, v(dst))
        k.valu("v_and_b32", v(vK + 12), 3, v(vS))
        k.valu("v_add_lshl_u32", v(dst), v(dst), v(vK + 12), 2)
        k.valu("v_mov_b32", v(vK + 12), OOB)
        k.valu("v_cmp_lt_u32", "vcc", 5, v(vK + 11))
        k.valu("v_cndmask_b32", v(dst), v(dst), v(vK + 12), "vcc")
        k.salu("s_cmp_eq_u32", s(tb), B2)
        k.salu("s_cselect_b32", s(sT0), 8, 16)
        k.valu("v_cmp_le_u32", "vcc", s(sT0), v(vS))
        k.valu("v_cndmask_b32", v(dst), v(dst), v(vK + 12), "vcc")
        k.salu("s_cmp_eq_u32", s(sAq), A2)
        k.salu("s_cselect_b32", s(sT0), 3, 4)
        k.valu("v_cmp_le_u32", "vcc", s(sT0), v(vG))
        k.valu("v_cndmask_b32", v(dst), v(dst), v(vK + 12), "vcc")
    k.salu("s_cmp_eq_u32", s(sT2), 3)
    k.salu("s_cselect_b32", s(sT0), OOB, 0)
    k.valu("v_add_u32", v(vO1), s(sT0), v(vO1))
    for r_ in (vO0, vO1):
        k.valu("v_cmp_gt_u32", "vcc", 4000, v(r_))
        k.valu("v_add_u32", v(r_), KVL, v(r_))
        k.valu("v_lshlrev_b32", v(vT), 2, v(vLane))
        k.valu("v_add_u32", v(vT), KVL - 4096, v(vT))
        k.valu("v_cndmask_b32", v(r_), v(vT), v(r_), "vcc")
        k.valu("v_cmp_eq_u32", "vcc", 10, v(vK + 7))
        k.valu("v_cndmask_b32", v(r_ + 219), v(r_), v(vT), "vcc")
    k.salu("s_mul_i32", s(sT0), s(sWave), 7 * 256)
    k.valu("v_lshlrev_b32", v(vPk), 2, v(vLane))
    k.valu("v_add_u32", v(vPk), s(sT0), v(vPk))
    k.valu("v_add_u32", v(vPk + 1), KVL, v(vPk))
    k.branch("s_branch", "L_k1_main")
    k.label("L_k1_setq")
    k.valu("v_mov_b32", v(vPk), 0)
    k.valu("v_mov_b32", v(vPk + 1), 0)
    k.salu("s_mul_i32", s(sT0), s(sCg), 160)
    k.salu("s_mul_i32", s(sT1), s(sWn), 80)
    k.salu("s_add_u32", s(sT0), s(sT0), s(sT1))
    for b in range(5):
        k.valu("v_lshlrev_b32", v(vT), 2, v(vG))
        k.valu("v_add_u32", v(vT), s(sT0), v(vT))
        if b < 4:
            k.salu("s_lshl_b32", s(sT1), s(sWm), 5)
            k.salu("s_xor_b32", s(sT1), s(sT1), 16 * b)
            k.valu("v_add_u32", v(vT), s(sT1), v(vT))
        else:
            k.valu("v_add_u32", v(vT), 64, v(vT))
        k.valu("v_lshrrev_b32", v(vT + 1), 5, v(vT))
        k.valu("v_lshlrev_b32", v(vT + 1), 17, v(vT + 1))
        k.valu("v_bfe_u32", v(vT + 2), v(vT), 3, 2)
        k.valu("v_lshl_add_u32", v(vT + 2), v(vT + 2), 4, v(vS))
        k.valu("v_lshl_add_u32", v(vT + 1), v(vT + 2), 4, v(vT + 1))
        k.valu("v_bfe_u32", v(vT + 2), v(vT), 2, 1)
        k.valu("v_lshl_add_u32", v(vQ + b), v(vT + 2), 3, v(vT + 1))
    k.salu("s_lshl_b32", s(sT0), s(sRb), 3)
    k.salu("s_lshl_b32", s(sT1), s(sWm), 2)
    k.salu("s_add_u32", s(sT0), s(sT0), s(sT1))
    k.salu("s_lshl_b32", s(sT1), s(sWn), 1)
    k.salu("s_add_u32", s(sQ0), s(sT0), s(sT1))
    k.salu("s_lshl_b32", s(sQ0), s(sQ0), 10)
    k.salu("s_xor_b32", s(sQ1), s(sQ0), 2048)
    for i in range(4):
        k.valu("v_mov_b32", v(vKA + i), 0)
    k.label("L_k1_main")

    def frag_reads(kap):
        t, u2 = kap >> 1, kap & 1
        buf = kap & 1
        ops = []
        d = SLOT if t % NSLOT else -(NSLOT - 1) * SLOT
        if u2 == 0 and t > 0:
            for r in (vX, vWb, vX + 1, vWb + 1, vWb + 2):
                ops.append(lambda r=r, d=d: k.valu("v_add_u32", v(r), d & 0xFFFFFFFF, v(r)))
        if u2 == 1 and t > 0:
            for r in (vX + 2, vX + 3):
                ops.append(lambda r=r, d=d: k.valu("v_add_u32", v(r), d & 0xFFFFFFFF, v(r)))

        def xr(ap):
            return lambda: k.ds_read("ds_read_b128", v(XF + buf * 16 + ap * 4, 4), v(vX + 2 * u2 + (ap >> 1)), (ap & 1) * 2048, tag=("fr", kap))

        def wr_(b, u):
            return lambda: k.ds_read("ds_read_b64_tr_b16", v(WF + buf * 20 + b * 4 + u * 2, 2), v(vWb + (b >> 1)),
                                     336 * (32 * u2 + u) + (32 * (b & 1) if b < 4 else 128), tag=("fr", kap))
        ops += [xr(0), wr_(0, 0), wr_(0, 1), xr(1), xr(2), xr(3)]
        for b in range(1, 5):
            ops += [wr_(b, 0), wr_(b, 1)]
        return ops

    k.stamp(1)
    k.wait(vm=0)
    k.barrier()
    k.stamp(2)
    for f in frag_reads(0):
        f()
    for kap in range(20):
        t, u2 = kap >> 1, kap & 1
        buf = kap & 1
        k.wait_tag(lg=("fr", kap))
        if u2 == 1 and t + 1 < 10:
            k.barrier()
        if kap in (4, 8, 12, 16):
            k.stamp(2 + kap // 4)
        if kap == 18:
            k.bload("buffer_load_dword", v(vOld), v(vFlag), s(S_DBG, 4), s(sFlagOff), flags="sc0 sc1", tag="poll")
        fill = frag_reads(kap + 1) if kap + 1 < 20 else []
        xs = [v(XF + buf * 16 + 4 * ap, 4) for ap in range(4)]
        mf = []
        for b in range(5):
            w = v(WF + buf * 20 + b * 4, 4)
            for ap in range(4):
                mf.append((v(acc(ap, b), 4), w, xs[ap]))
            if b in (0, 1, 4):
                mf.append((v(CS[b], 4), w, v(vOnes, 4)))
            if b >= 1:
                i = b - 1
                mf.append((v(RS + 4 * i, 4), v(vOnes, 4) if i < 2 else xs[i & 1], xs[i & 1]))
        fi = 0
        for i, (d, A, B) in enumerate(mf):
            k.mfma("16x16x32", d, A, B, 0 if kap == 0 else d)
            for _ in range(1 if i else 2):
                if fi < len(fill):
                    fill[fi]()
                    fi += 1
        while fi < len(fill):
            fill[fi]()
            fi += 1

    k.stamp(7)
    vW = XF
    for b in range(2):
        k.ds_write("ds_write_b128", v(vCsW), v(CS[b], 4), 64 * b, tag="csw")
    for ap in range(2):
        g0 = RS + 8 + 4 * ap
        q_ = v(vW + ap)
        k.valu("v_cndmask_b32", q_, v(g0), v(g0 + 1), s(sMask, 2))
        k.valu("v_cndmask_b32", q_, q_, v(g0 + 2), s(sMask + 2, 2))
        k.valu("v_cndmask_b32", q_, q_, v(g0 + 3), s(sMask + 4, 2))
        k.valu("v_cndmask_b32", q_, 0, q_, s(sMask + 6, 2))
    xsum_g2(k, v(vW), v(vW + 2), v(vW + 1), v(vW + 3))
    k2a, k2b = K("t"), K("t")
    ln_stats(k2a, v(RS), v(vW), v(vM[0]), v(vM[0] + 1), v(vW + 2), s(sC640))
    ln_stats(k2b, v(RS + 4), v(vW + 1), v(vM[1]), v(vM[1] + 1), v(vW + 3), s(sC640))
    for x_, y_ in zip(k2a.ins, k2b.ins):
        k.ins += [x_, y_]
    for ap in range(2):
        k.valu("v_mul_f32", v(vM[ap]), v(vM[ap]), v(vM[ap] + 1))
    for ap in range(2):
        k.valu("v_sub_f32", v(vM[ap]), 0, v(vM[ap]))
        k.ds_write("ds_write_b64", v(vStW), v(vM[ap], 2), 128 * ap, tag="stw")
    k.wait_tag(vm="poll")
    k.valu("v_readfirstlane_b32", s(sOld), v(vOld))
    k.wait(lg=0)
    k.barrier()
    for ap in range(2):
        k.ds_read("ds_read_b64", v(vM[2 + ap], 2), v(vStR), 128 * ap, tag="str")
        k.ds_read("ds_read_b128", v(CS[2 + ap], 4), v(vCsR), 64 * ap, tag="str")

    def pk(op, d, srcs, sel):
        lo = ",".join("1" if c == "h" else "0" for c in sel)
        hi = ",".join("0" if c == "l" else "1" for c in sel)
        k.valu(op, d, *srcs, mods="op_sel:[%s] op_sel_hi:[%s]" % (lo, hi))

    def elem_tile(ap, b, mode, w):
        A = acc(ap, b)
        C = CS[b]
        c0, t0, u0, o0 = w, w + 4, w + 8, w + 12
        for h in range(2):
            if mode == "id":
                pk("v_pk_mul_f32", v(c0 + 2 * h, 2), (v(vM[ap], 2), v(C + 2 * h, 2)), "lp")
            else:
                pk("v_pk_fma_f32", v(c0 + 2 * h, 2), (v(vM[ap], 2), v(C + 2 * h, 2), v(vE, 2)), "lpl")
        for h in range(2):
            pk("v_pk_fma_f32", v(t0 + 2 * h, 2), (v(A + 2 * h, 2), v(vM[ap], 2), v(c0 + 2 * h, 2)), "php")
        if mode != "id":
            for h in range(2):
                pk("v_pk_fma_f32", v(u0 + 2 * h, 2), (v(t0 + 2 * h, 2), v(vL, 2), v(vE, 2)), "plh")
            for r in range(4):
                k.valu("v_exp_f32", v(u0 + r), v(u0 + r), mods="clamp")
                k.valu("v_max_f32", v(c0 + r), v(vE), v(t0 + r))
            for h in range(2):
                k.valu("v_pk_add_f32", v(c0 + 2 * h, 2), v(c0 + 2 * h, 2), v(u0 + 2 * h, 2))
            if mode == "mix":
                for r in range(4):
                    k.valu("v_sub_f32", v(t0 + r), v(t0 + r), v(vE))
                    k.valu("v_cndmask_b32", v(c0 + r), v(t0 + r), v(c0 + r), s(sMask + 8, 2))
            src = c0
        else:
            src = t0
        k.valu("v_cvt_pk_bf16_f32", v(o0), v(src), v(src + 1))
        k.valu("v_cvt_pk_bf16_f32", v(o0 + 1), v(src + 2), v(src + 3))
        return o0

    k.salu("s_cmp_eq_u32", s(sRole), 1)
    k.branch("s_cbranch_scc1", "L_k1_epiq")
    k.valu("v_mov_b32", v(RS), 0x3F80)
    k.valu("v_mov_b32", v(RS + 1), 0)
    for ap in range(4):
        k.ds_write("ds_write_b64", v(vKA + 2 + (ap >> 1)), v(RS, 2), (ap & 1) * 16 * KVP + 160, tag="kvw")
    order = [(ap, b) for ap in range(2) for b in (0, 1, 4)] + [(ap, b) for ap in range(4) for b in range(5) if not (ap < 2 and b in (0, 1, 4))]
    modes = ["phi", "phi", "mix", "id", "id"]
    k.salu("s_cmp_eq_u32", s(sWm), 1)
    k.branch("s_cbranch_scc1", "L_k1_epi_wm1")
    lg_save = list(k.lg)
    for wm in range(2):
        if wm == 1:
            k.branch("s_branch", "L_k1_epi_j")
            k.label("L_k1_epi_wm1")
            k.lg = list(lg_save)
        for i, (ap, b) in enumerate(order):
            if i == 6:
                k.wait_tag(lg="str")
            ab = (b ^ (2 * wm)) if b < 4 else 4
            o = elem_tile(ap, b, modes[ab], vW + 16 * (i % 4))
            k.ds_write("ds_write_b64", v(vKA + (ap >> 1)), v(o, 2), (ap & 1) * 16 * KVP + 32 * ab, tag="kvw")
    k.label("L_k1_epi_j")
    k.stamp(8)
    k.wait(lg=0)
    k.barrier()
    FA, FB0, FB1, D0, D1 = ACC, ACC + 16, ACC + 32, ACC + 96, ACC + 100
    jobs = [(hp, ks) for hp in range(2) for ks in range(4)]
    for n in range(9):
        if n < 8:
            hp, ks = jobs[n]
            for u in range(2):
                off = hp * KVT + (32 * ks + 2 * u) * KVP
                for F, A_ in ((FA, vAa), (FB0, vB0a), (FB1, vB1a)):
                    k.ds_read("ds_read_b64_tr_b16", v(F + hp * 48 + ks * 4 + 2 * u, 2), v(A_), off, tag=("kv", n))
        if n >= 1:
            hp, kk = jobs[n - 1]
            k.wait_tag(lg=("kv", n - 1))
            for D, F in ((D0, FB0), (D1, FB1)):
                k.mfma("16x16x32", v(D + 8 * hp, 4), v(FA + hp * 48 + kk * 4, 4), v(F + hp * 48 + kk * 4, 4), 0 if kk == 0 else v(D + 8 * hp, 4))
    for hp in range(2):
        for r in range(4):
            for D, O_ in ((D0, vO0), (D1, vO1)):
                k.ds_write("ds_write_b32", v(O_ if r == 0 else O_ + 219), v(D + 8 * hp + r), 3360 * hp + 80 * r, tag="kva")
    k.wait(lg=0)
    k.barrier()
    for n in range(7):
        k.ds_read("ds_read_b32", v(ACC + n), v(vPk + 1), 256 * n, tag=("kr", n))
    srd_off(k, S_X, "s50", "s51", 0, 0)
    k.salu("s_add_u32", s(S_X), s(S_X), s(sKVo))
    k.salu("s_addc_u32", s(S_X + 1), s(S_X + 1), 0)
    k.salu("s_mov_b32", s(S_X + 2), 6720)
    k.stamp(9)
    k.label("L_k1_poll")
    k.salu("s_cmp_lg_u32", s(sOld), 0)
    k.branch("s_cbranch_scc1", "L_k1_go")
    k.raw("s_sleep 2", 4, "other")
    k.bload("buffer_load_dword", v(vOld), v(vFlag), s(S_DBG, 4), s(sFlagOff), flags="sc0 sc1", tag="poll")
    k.wait(vm=0)
    k.valu("v_readfirstlane_b32", s(sOld), v(vOld))
    k.nop(3)
    k.branch("s_branch", "L_k1_poll")
    k.label("L_k1_go")
    k.nop(7)
    k.lg = [("kr", n) for n in range(7)]
    for n in range(7):
        k.wait_tag(lg=("kr", n))
        k.bstore("buffer_atomic_add_f32", v(ACC + n), v(vPk), s(S_X, 4), 0, offset=256 * n, tag="kvat")
    k.branch("s_branch", "L_k1_fin")
    k.label("L_k1_epiq")
    k.lg = ["str"] * 4
    for i, (ap, b) in enumerate(order):
        if i == 6:
            k.wait_tag(lg="str")
        o = elem_tile(ap, b, "phi", vW + 16 * (i % 4))
        k.bstore("buffer_store_dwordx2", v(o, 2), v(vQ + b), s(S_WS, 4), s(sQ0 if ap < 2 else sQ1), offset=(ap & 1) * 1024, tag="pq")
    k.branch("s_branch", "L_k1_fin")

    k.label("L_k1_rt")
    k.vm, k.lg = [], []
    vT = 120
    vZero = 12
    sR, sW8, sLd, sN, sStg, sI, sSt_, sSub = range(66, 74)
    sJ = [dict(St=76, Cb=77, Job=78, O=79, Stg=80), dict(St=81, Cb=82, Job=83, O=84, Stg=85)]
    sKind = 86
    vRt, vCs, vOne, vL16 = 4, 7, 8, 9
    vRa, vRs = [16, 17], [18, 19]
    vPf = 20
    R0 = 40
    k.salu("s_sub_u32", s(sR), s(sJJ), 24)
    k.salu("s_lshl_b32", s(sI), s(sR), 3)
    k.salu("s_add_u32", s(sI), s(sI), s(sWave))
    k.salu("s_lshl_b32", s(sR), s(sR), 3)
    k.salu("s_add_u32", s(sR), s(sR), s(sXcd))
    k.salu("s_lshl_b32", s(sW8), s(sR), 3)
    k.salu("s_add_u32", s(sW8), s(sW8), s(sWave))
    k.valu("v_lshlrev_b32", v(vL16), 4, v(vLane))
    k.valu("v_mul_u32_u24", v(vT + 8), 1280, v(vLane))
    k.wait(lg=0)
    srd(k, S_X, "s32", "s33", 2621440)
    srd(k, S_W, "s34", "s35", 2457600)
    srd(k, S_WS, "s50", "s51", WS_SIZE)
    k.salu("s_mov_b32", s(sN), 0)
    k.label("L_k1_pf")
    k.salu("s_mul_i32", s(sSt_), s(sI), 2850)
    k.salu("s_lshr_b32", s(sSt_), s(sSt_), 16)
    for u in range(256):
        assert (u * 2850) >> 16 == u // 23
    k.salu("s_mul_i32", s(sT0), s(sSt_), 23)
    k.salu("s_sub_u32", s(sSub), s(sI), s(sT0))
    k.salu("s_cmp_ge_u32", s(sSub), 8)
    k.branch("s_cbranch_scc1", "L_k1_pfw")
    k.salu("s_lshr_b32", s(sT0), s(sXcd), 1)
    k.salu("s_lshl_b32", s(sT0), s(sT0), 3)
    k.salu("s_add_u32", s(sT0), s(sT0), s(sSub))
    k.salu("s_mul_i32", s(sT0), s(sT0), 64 * 1280)
    k.salu("s_lshl_b32", s(sT1), s(sSt_), 7)
    k.salu("s_add_u32", s(sT0), s(sT0), s(sT1))
    k.salu("s_cmp_ge_u32", s(sSt_), 10)
    k.salu("s_cselect_b32", s(sT0), OOB, s(sT0))
    k.bload("buffer_load_dword", v(vPf), v(vT + 8), s(S_X, 4), s(sT0), tag="pf")
    k.branch("s_branch", "L_k1_pfn")
    k.label("L_k1_pfw")
    k.salu("s_sub_u32", s(sT0), s(sSub), 8)
    k.salu("s_lshl_b32", s(sT0), s(sT0), 6)
    k.valu("v_add_u32", v(vT), s(sT0), v(vLane))
    divmagic(k, v(vT + 1), v(vT), 15, None, 1023)
    k.valu("v_mul_u32_u24", v(vT + 2), 15, v(vT + 1))
    k.valu("v_sub_u32", v(vT + 2), v(vT), v(vT + 2))
    divmagic(k, v(vT + 3), v(vT + 2), 5, None, 15)
    k.valu("v_mul_u32_u24", v(vT + 1), 3840, v(vT + 1))
    k.valu("v_mul_u32_u24", v(vT + 3), 640, v(vT + 3))
    k.valu("v_lshl_add_u32", v(vT + 1), v(vT + 2), 7, v(vT + 1))
    k.valu("v_add_u32", v(vT + 1), v(vT + 1), v(vT + 3))
    k.salu("s_mul_i32", s(sT0), s(sSt_), 64 * 3840)
    k.salu("s_and_b32", s(sT1), s(sXcd), 1)
    k.salu("s_mul_i32", s(sT1), s(sT1), 640)
    k.salu("s_add_u32", s(sT0), s(sT0), s(sT1))
    k.bload("buffer_load_dword", v(vPf + 1), v(vT + 1), s(S_W, 4), s(sT0), tag="pf")
    k.label("L_k1_pfn")
    k.salu("s_add_u32", s(sI), s(sI), 64)
    k.salu("s_add_u32", s(sN), s(sN), 1)
    k.salu("s_cmp_lt_u32", s(sN), cfg.get("k1_pfn", 4))
    k.branch("s_cbranch_scc1", "L_k1_pf")
    k.salu("s_mul_i32", s(sJ[0]["Stg"]), s(sWave), 19456)
    k.salu("s_add_u32", s(sJ[1]["Stg"]), s(sJ[0]["Stg"]), 10240)
    k.valu("v_mov_b32", v(vOne), ONES_BF16)
    for i in range(4):
        k.valu("v_mov_b32", v(vZero + i), 0)
    k.valu("v_bfe_u32", v(vT), v(vLane), 2, 2)
    k.valu("v_lshlrev_b32", v(vT), 7, v(vT))
    k.valu("v_lshl_add_u32", v(vT), v(vG), 5, v(vT))
    k.valu("v_lshrrev_b32", v(vT + 1), 3, v(vLane))
    k.valu("v_and_b32", v(vT + 2), 7, v(vLane))
    k.valu("v_lshlrev_b32", v(vT + 2), 4, v(vT + 2))

    def issue(J, n, ld_step):
        for i in range(n):
            k.salu("s_add_u32", "m0", s(J["Stg"]), i * 1024)
            k.salu("s_add_u32", s(sT0), s(sLd), i * ld_step)
            k.dma(v(vRt), s(S_A, 4), s(sT0), tag="rt")

    def finish(j, n, st_offs, colsum):
        for i in range(n + 1):
            if i < n:
                for u in range(2):
                    k.ds_read("ds_read_b64_tr_b16", v(R0 + 40 * j + 4 * i + 2 * u, 2), v(vRa[j]), i * 1024 + u * 512, tag=("rr", j, i))
            if i >= 1:
                k.wait_tag(lg=("rr", j, i - 1))
                st_offs(i - 1)
                k.bstore("buffer_store_dwordx4", v(R0 + 40 * j + 4 * (i - 1), 4), v(vRs[j]), s(S_WS, 4), s(sT1), flags=cfg.get("rt_st", "sc1"), tag="rs")
                if colsum:
                    for q in range(4):
                        k.valu("v_dot2c_f32_bf16", v(vCs), v(R0 + 40 * j + 4 * (i - 1) + q), v(vOne))

    def nat_addrs(j):
        J = sJ[j]
        k.valu("v_and_b32", v(vT + 3), 3, v(vLane))
        k.valu("v_lshl_add_u32", v(vRa[j]), v(vT + 3), 3, v(vT))
        k.valu("v_add_u32", v(vRa[j]), s(J["Stg"]), v(vRa[j]))
        k.salu("s_lshl_b32", s(sT0), s(J["Cb"]), 6)
        k.valu("v_add_u32", v(vT + 3), s(sT0), v(vLane))
        col_to_tile_slot(k, v(vT + 3), v(vRs[j]), v(vT + 4), v(vT + 5), v(vT + 6), v(vT + 7))
        k.valu("v_lshlrev_b32", v(vRs[j]), 10, v(vRs[j]))
        k.valu("v_lshl_add_u32", v(vRs[j]), v(vT + 4), 4, v(vRs[j]))

    def issue_wd(j):
        J = sJ[j]
        srd(k, S_A, "s44", "s45", 2211840)
        k.salu("s_mul_i32", s(J["Cb"]), s(J["Job"]), 2731)
        k.salu("s_lshr_b32", s(J["Cb"]), s(J["Cb"]), 16)
        k.salu("s_mul_i32", s(sT0), s(J["Cb"]), 24)
        k.salu("s_sub_u32", s(J["O"]), s(J["Job"]), s(sT0))
        k.salu("s_mul_i32", s(J["O"]), s(J["O"]), 9)
        k.salu("s_mul_i32", s(sLd), s(J["O"]), 8 * 1280)
        k.salu("s_lshl_b32", s(sT0), s(J["Cb"]), 7)
        k.salu("s_add_u32", s(sLd), s(sLd), s(sT0))
        k.valu("v_mul_u32_u24", v(vRt), 1280, v(vT + 1))
        k.valu("v_add_u32", v(vRt), v(vRt), v(vT + 2))
        issue(J, 9, 8 * 1280)
        nat_addrs(j)

    def finish_wd(j):
        J = sJ[j]

        def off(i):
            k.salu("s_add_u32", s(sT0), s(J["O"]), i)
            k.salu("s_lshr_b32", s(sT1), s(sT0), 2)
            k.salu("s_mul_i32", s(sT1), s(sT1), 40960)
            k.salu("s_and_b32", s(sT0), s(sT0), 3)
            k.salu("s_lshl_b32", s(sT0), s(sT0), 8)
            k.salu("s_add_u32", s(sT1), s(sT1), s(sT0))
            k.salu("s_add_u32", s(sT1), s(sT1), WS_WDF)
        finish(j, 9, off, False)
    for u in range(240):
        assert (u * 2731) >> 16 == u // 24

    k.salu("s_cmp_ge_u32", s(sR), 54)
    k.branch("s_cbranch_scc1", "L_k1_rt_a_wd")
    J = sJ[0]
    k.salu("s_cmp_ge_u32", s(sR), 27)
    k.salu("s_cselect_b32", s(J["Job"]), 1, 0)
    k.salu("s_cselect_b32", s(S_A), "s42", "s40")
    k.salu("s_cselect_b32", s(S_A + 1), "s43", "s41")
    k.salu("s_mov_b32", s(S_A + 2), 2211840)
    k.salu("s_mov_b32", s(S_A + 3), 0x20000)
    k.salu("s_mul_i32", s(sT0), s(J["Job"]), 27)
    k.salu("s_sub_u32", s(J["Cb"]), s(sR), s(sT0))
    k.salu("s_mul_i32", s(sLd), s(sWave), 8 * 3456)
    k.salu("s_lshl_b32", s(sT0), s(J["Cb"]), 7)
    k.salu("s_add_u32", s(sLd), s(sLd), s(sT0))
    k.valu("v_mul_u32_u24", v(vRt), 3456, v(vT + 1))
    k.valu("v_add_u32", v(vRt), v(vRt), v(vT + 2))
    issue(J, 10, 64 * 3456)
    k.salu("s_mul_i32", s(J["St"]), s(J["Cb"]), 4 * 40960)
    k.salu("s_lshl_b32", s(sT0), s(J["Job"]), 8)
    k.salu("s_add_u32", s(J["St"]), s(J["St"]), s(sT0))
    k.salu("s_lshl_b32", s(sT0), s(sWave), 9)
    k.salu("s_add_u32", s(J["St"]), s(J["St"]), s(sT0))
    k.salu("s_add_u32", s(J["St"]), s(J["St"]), WS_WGUF)
    k.valu("v_and_b32", v(vT + 3), 1, v(vLane))
    k.valu("v_lshl_add_u32", v(vRa[0]), v(vT + 3), 4, v(vT))
    k.valu("v_bfe_u32", v(vT + 3), v(vLane), 1, 1)
    k.valu("v_lshl_add_u32", v(vRa[0]), v(vT + 3), 3, v(vRa[0]))
    k.valu("v_add_u32", v(vRa[0]), s(J["Stg"]), v(vRa[0]))
    k.valu("v_mul_u32_u24", v(vRs[0]), 40960, v(vG))
    k.valu("v_lshl_add_u32", v(vRs[0]), v(vS), 4, v(vRs[0]))
    k.valu("v_mov_b32", v(vCs), 0)
    k.salu("s_add_u32", s(sJ[1]["Job"]), s(sW8), 160)
    k.salu("s_mov_b32", s(sKind), 0)
    k.valu("v_mov_b32", v(vRa[1]), 0)
    k.valu("v_mov_b32", v(vRs[1]), 0)
    k.salu("s_cmp_ge_u32", s(sW8), 40)
    k.branch("s_cbranch_scc1", "L_k1_rt_go")
    k.branch("s_branch", "L_k1_rt_b_wo")
    def issue_wo(j):
        J = sJ[j]
        srd(k, S_A, "s36", "s37", 819200)
        k.salu("s_mul_i32", s(J["O"]), s(J["Job"]), 6554)
        k.salu("s_lshr_b32", s(J["O"]), s(J["O"]), 16)
        k.salu("s_mul_i32", s(sT0), s(J["O"]), 10)
        k.salu("s_sub_u32", s(J["Cb"]), s(J["Job"]), s(sT0))
        k.salu("s_mul_i32", s(sT0), s(J["O"]), 13108)
        k.salu("s_lshr_b32", s(sT0), s(sT0), 16)
        k.salu("s_mul_i32", s(sLd), s(sT0), 160 * 1280)
        k.salu("s_mul_i32", s(sT0), s(sT0), 5)
        k.salu("s_sub_u32", s(sT0), s(J["O"]), s(sT0))
        k.salu("s_lshl_b32", s(sT0), s(sT0), 3)
        k.valu("v_add_u32", v(vT + 3), s(sT0), v(vT + 1))
        divmagic(k, v(vT + 4), v(vT + 3), 5, None, 63)
        k.valu("v_mul_u32_u24", v(vT + 4), 15, v(vT + 4))
        k.valu("v_add_u32", v(vT + 3), v(vT + 3), v(vT + 4))
        k.valu("v_mul_u32_u24", v(vRt), 1280, v(vT + 3))
        k.valu("v_add_u32", v(vRt), v(vRt), v(vT + 2))
        k.salu("s_lshl_b32", s(sT0), s(J["Cb"]), 7)
        k.salu("s_add_u32", s(sLd), s(sLd), s(sT0))
        issue(J, 4, 5 * 1280)
        nat_addrs(j)
        k.salu("s_mul_i32", s(J["St"]), s(J["O"]), 40960)
        k.salu("s_add_u32", s(J["St"]), s(J["St"]), WS_WOF)

    k.label("L_k1_rt_a_wd")
    k.salu("s_sub_u32", s(sJ[0]["Job"]), s(sW8), 432)
    k.salu("s_lshl_b32", s(sJ[0]["Job"]), s(sJ[0]["Job"]), 1)
    k.salu("s_add_u32", s(sJ[1]["Job"]), s(sJ[0]["Job"]), 1)
    issue_wo(0)
    k.label("L_k1_rt_b_wo")
    k.salu("s_mov_b32", s(sKind), 2)
    issue_wo(1)
    k.label("L_k1_rt_go")
    k.salu("s_sub_u32", s(sT0), s(sJJ), 24)
    k.salu("s_lshl_b32", s(sT0), s(sT0), 3)
    k.salu("s_add_u32", s(sT0), s(sT0), s(sWave))
    k.salu("s_lshl_b32", s(sT0), s(sT0), 10)
    k.salu("s_add_u32", s(sT0), s(sT0), "(k234_kernel-k1_kernel)")
    k.bload("buffer_load_dwordx4", v(vPf + 4, 4), v(vL16), s(S_CODE, 4), s(sT0), tag="pre2")
    k.salu("s_lshl_b32", s(sT0), s(sW8), 10)
    k.salu("s_add_u32", s(sT1), s(sT0), WS_ST)
    k.salu("s_cmp_ge_u32", s(sW8), 20)
    k.salu("s_cselect_b32", s(sT1), OOB, s(sT1))
    k.bstore("buffer_store_dwordx4", v(vZero, 4), v(vL16), s(S_WS, 4), s(sT1), tag="z")
    k.wait(vm=2)
    k.stamp(1)
    k.salu("s_cmp_ge_u32", s(sR), 54)
    k.branch("s_cbranch_scc1", "L_k1_rt_fa_wd")
    finish(0, 10, lambda i: k.salu("s_add_u32", s(sT1), s(sJ[0]["St"]), i * 4096), True)
    CSR_ = 8 * 19456
    k.valu("v_lshlrev_b32", v(vT + 3), 2, v(vLane))
    k.salu("s_lshl_b32", s(sT0), s(sWave), 8)
    k.salu("s_add_u32", s(sT0), s(sT0), CSR_)
    k.valu("v_add_u32", v(vT + 4), s(sT0), v(vT + 3))
    k.ds_write("ds_write_b32", v(vT + 4), v(vCs), 0, tag="cw")
    k.wait(lg=0)
    k.barrier()
    k.valu("v_add_u32", v(vT + 4), CSR_, v(vT + 3))
    for i in range(8):
        k.ds_read("ds_read_b32", v(vT + 6 + i), v(vT + 4), 256 * i, tag="cr")
    k.wait(lg=0)
    for i in range(1, 8):
        k.valu("v_add_f32", v(vT + 6), v(vT + 6), v(vT + 6 + i))
    k.valu("v_lshlrev_b32", v(vT + 4), 7, v(vG))
    k.valu("v_lshl_add_u32", v(vT + 4), v(vS), 2, v(vT + 4))
    k.salu("s_lshl_b32", s(sT0), s(sJ[0]["Cb"]), 9)
    k.salu("s_lshl_b32", s(sT1), s(sJ[0]["Job"]), 6)
    k.salu("s_add_u32", s(sT0), s(sT0), s(sT1))
    k.salu("s_add_u32", s(sT0), s(sT0), WS_CS)
    k.salu("s_cmp_lg_u32", s(sWave), 0)
    k.salu("s_cselect_b32", s(sT0), OOB, s(sT0))
    k.bstore("buffer_store_dword", v(vT + 6), v(vT + 4), s(S_WS, 4), s(sT0), tag="cs")
    k.branch("s_branch", "L_k1_rt_fb")
    k.label("L_k1_rt_fa_wd")
    finish(0, 4, lambda i: k.salu("s_add_u32", s(sT1), s(sJ[0]["St"]), i * 256), False)
    k.label("L_k1_rt_fb")
    k.salu("s_cmp_eq_u32", s(sKind), 0)
    k.branch("s_cbranch_scc1", "L_k1_fin")
    finish(1, 4, lambda i: k.salu("s_add_u32", s(sT1), s(sJ[1]["St"]), i * 256), False)
    k.label("L_k1_fin")
    k.stamp_flush(0, "s50", "s51", WS_TS, "v38", v(vLane))
    k.label("L_end_k1_kernel")
    k.raw("s_endpgm", 4, "other")
    return k, NV, 0, K1_LDS, 512
```

```python
from common import *

KVR = 14336
ZR = 4 * KVR
EX = 65536
RT = 131072
K2_LDS = RT


def wg_map_2(k, sRb2, sCb, t0, t1):
    k.salu("s_and_b32", s(t0), "s2", 7)
    k.salu("s_lshr_b32", s(t1), "s2", 3)
    k.salu("s_lshr_b32", s(sRb2), s(t0), 1)
    k.salu("s_lshl_b32", s(sRb2), s(sRb2), 3)
    k.salu("s_and_b32", s(sCb), s(t0), 1)
    k.salu("s_lshl_b32", s(sCb), s(sCb), 2)
    k.salu("s_lshr_b32", s(t0), s(t1), 2)
    k.salu("s_add_u32", s(sRb2), s(sRb2), s(t0))
    k.salu("s_and_b32", s(t0), s(t1), 3)
    k.salu("s_add_u32", s(sCb), s(sCb), s(t0))


def h_chunk_addr(k, vA, vB, vLane, vG, vS, sRb2, sCb, sWave, t0, sT0, sT1):
    k.salu("s_lshl_b32", s(sT0), s(sRb2), 1)
    k.salu("s_lshr_b32", s(sT1), s(sWave), 1)
    k.salu("s_add_u32", s(sT0), s(sT0), s(sT1))
    k.salu("s_mul_i32", s(sT0), s(sT0), 40960)
    k.salu("s_mul_i32", s(sT1), s(sCb), 5120)
    k.salu("s_add_u32", s(sT0), s(sT0), s(sT1))
    k.salu("s_and_b32", s(sT1), s(sWave), 1)
    k.salu("s_lshl_b32", s(sT1), s(sT1), 8)
    k.salu("s_add_u32", s(sT0), s(sT0), s(sT1))
    k.salu("s_add_u32", s(sT0), s(sT0), WS_H)
    k.valu("v_lshlrev_b32", v(t0), 4, v(vS))
    k.valu("v_add_u32", v(t0), s(sT0), v(t0))
    k.valu("v_lshrrev_b32", v(vA), 1, v(vG))
    k.valu("v_lshl_add_u32", v(vA), v(vA), 10, v(t0))
    k.valu("v_and_b32", v(vB), 1, v(vG))
    k.valu("v_lshl_add_u32", v(vA), v(vB), 9, v(vA))
    k.valu("v_lshl_add_u32", v(t0), v(vB), 3, v(t0))
    k.valu("v_lshrrev_b32", v(vB), 1, v(vG))
    k.valu("v_lshl_add_u32", v(vB), v(vB), 9, v(t0))
    k.valu("v_add_u32", v(vB), 4096, v(vB))


def reduce_exchange(k, accs, own, vLane16, sWave, vT, sT0, stage):
    for ap in range(1, 4):
        k.salu("s_add_u32", s(sT0), s(sWave), ap)
        k.salu("s_and_b32", s(sT0), s(sT0), 3)
        k.salu("s_mul_i32", s(sT0), s(sT0), 15360)
        k.salu("s_add_u32", s(sT0), s(sT0), EX + (ap - 1) * 5120)
        k.valu("v_add_u32", v(vT + ap), s(sT0), v(vLane16))
        for T in range(5):
            k.ds_write("ds_write_b128", v(vT + ap), accs[ap][T], T * 1024, tag="exw")
    k.salu("s_mul_i32", s(sT0), s(sWave), 15360)
    k.salu("s_add_u32", s(sT0), s(sT0), EX)
    k.valu("v_add_u32", v(vT), s(sT0), v(vLane16))
    k.wait(lg=0)
    k.barrier()
    for i in range(15):
        k.ds_read("ds_read_b128", v(stage + 4 * i, 4), v(vT), i * 1024, tag=("exr", i))
    for src in range(3):
        for T in range(5):
            i = src * 5 + T
            k.wait_tag(lg=("exr", i))
            for h in range(2):
                k.valu("v_pk_add_f32", v(own[T] + 2 * h, 2), v(own[T] + 2 * h, 2), v(stage + 4 * i + 2 * h, 2))


def residual_pack(k, own, res, outp, tmp):
    order = []
    for p in range(2):
        order += [(own[2 * p], res + 4 * p), (own[2 * p] + 2, res + 4 * p + 1), (own[2 * p + 1], res + 4 * p + 2), (own[2 * p + 1] + 2, res + 4 * p + 3)]
    order += [(own[4], res + 8), (own[4] + 2, res + 9)]
    for i, (o, r) in enumerate(order):
        t = tmp + 4 * (i & 1)
        k.valu("v_cvt_pk_bf16_f32", v(t), v(o), v(o + 1))
        k.valu("v_lshlrev_b32", v(o), 16, v(t))
        k.valu("v_and_b32", v(o + 1), 0xFFFF0000, v(t))
        k.valu("v_lshlrev_b32", v(t + 2), 16, v(r))
        k.valu("v_and_b32", v(t + 3), 0xFFFF0000, v(r))
        k.valu("v_pk_add_f32", v(o, 2), v(o, 2), v(t + 2, 2))
        k.valu("v_cvt_pk_bf16_f32", v(outp + i), v(o), v(o + 1))
    return order


def gen_k2(cfg, k):
    S_X, S_WS, S_KV, S_GU = 4, 8, 12, 16
    sWave, sRb2, sCb, sT0, sT1, sT2, sU, sMat, sCb64, sKb, sLds, sEps = 48, 49, 50, 51, 52, 53, 54, 55, 56, 57, 58, 59
    sM = 60
    vLane, vG, vS, vL16 = 1, 2, 3, 4
    vPq = 5
    vW4 = 9
    vT = 10
    KVF, D1, D2, OF = 16, 96, 144, 192
    OF3, OWN, XR = 16, 36, 96
    A_PQ, A_WO, A_ACC = 0, 80, 180

    def of(ap):
        return OF + 20 * ap if ap < 3 else OF3

    k.diag = cfg.get("diag", False); k.diagv = "v255"
    if k.diag:
        k.valu("v_mov_b32", k.diagv, 0)
    k.stamp(0)
    k.sload(2, s(36, 2), "s[0:1]", 0)
    k.sload(2, s(46, 2), "s[0:1]", 72)
    k.valu("v_and_b32", v(vLane), 63, "v0")
    k.valu("v_lshrrev_b32", v(vT), 6, "v0")
    k.valu("v_readfirstlane_b32", s(sWave), v(vT))
    k.valu("v_lshrrev_b32", v(vG), 4, v(vLane))
    k.valu("v_and_b32", v(vS), 15, v(vLane))
    k.valu("v_lshlrev_b32", v(vL16), 4, v(vLane))
    wg_map_2(k, sRb2, sCb, sT0, sT1)
    for ap in range(4):
        k.salu("s_add_u32", s(sT0), s(sWave), ap)
        k.salu("s_and_b32", s(sT0), s(sT0), 3)
        k.salu("s_lshl_b32", s(sT0), s(sT0), 10)
        k.valu("v_add_u32", v(vPq + ap), s(sT0), v(vL16))
    k.valu("v_add_u32", v(vW4), 4096, v(vL16))
    k.salu("s_mul_i32", s(sLds), s(sWave), KVR)
    k.wait(lg=0)
    srd(k, S_X, "s36", "s37", 2621440)
    srd(k, S_WS, "s46", "s47", WS_SIZE)
    srd_off(k, S_KV, "s46", "s47", WS_KV, KV_BYTES)
    k.salu("s_mul_i32", s(sT0), s(sWave), 13440)
    for i in range(14):
        if i % 4 == 0:
            k.salu("s_add_u32", "m0", s(sLds), (i // 4) * 4096)
            k.salu("s_add_u32", s(sT1), s(sT0), (i // 4) * 4096)
        k.dma(v(vL16), s(S_KV, 4), s(sT1), offset=(i % 4) * 1024, tag="kv")
    sPq, sWo, sRt, sLo = 68, 69, 70, 71
    k.salu("s_mul_i32", s(sPq), s(sWave), 5 * 131072)
    k.salu("s_lshl_b32", s(sT1), s(sRb2), 12)
    k.salu("s_add_u32", s(sPq), s(sPq), s(sT1))
    pq_loads, wo_loads, rt_loads = [], [], []
    for ap in range(4):
        for j in range(5):
            def f(ap=ap, j=j):
                k.salu("s_add_u32", s(sLo), s(sPq), j * 131072 + WS_PQ)
                k.bload("buffer_load_dwordx4", a(A_PQ + (ap * 5 + j) * 4, 4), v(vPq + ap), s(S_WS, 4), s(sLo), tag=("pq", ap))
            pq_loads.append(f)
    k.salu("s_mul_i32", s(sWo), s(sWave), 5 * 40960)
    k.salu("s_mul_i32", s(sT1), s(sCb), 5120)
    k.salu("s_add_u32", s(sWo), s(sWo), s(sT1))
    k.salu("s_add_u32", s(sWo), s(sWo), WS_WOF)
    for j in range(5):
        for T in range(5):
            def f(j=j, T=T):
                if T < 4:
                    k.bload("buffer_load_dwordx4", a(A_WO + (j * 5 + T) * 4, 4), v(vL16), s(S_WS, 4), s(sWo), offset=T * 1024, tag="wo")
                else:
                    k.bload("buffer_load_dwordx4", a(A_WO + (j * 5 + T) * 4, 4), v(vW4), s(S_WS, 4), s(sWo), tag="wo")
                    k.salu("s_add_u32", s(sWo), s(sWo), 40960)
            wo_loads.append(f)
    lq = pq_loads + wo_loads + rt_loads

    def pump(n=1):
        for _ in range(n):
            if lq:
                lq.pop(0)()

    k.stamp(1)
    pairs = []
    for m in range(12):
        heads = sorted(set((4 * m + r) // 6 for r in range(4)))
        js = sorted(set(j for h in heads for j in range((20 * h) // 32, (20 * h + 19) // 32 + 1)))
        pairs += [(m, j) for j in js]
    assert len(pairs) == 20
    AD = D2
    U_, HP = OF, OF + 12
    V_, HD = OF + 24, OF + 34
    W_ = OF + 44
    k.valu("v_mov_b32", v(W_ + 4), 0)
    k.valu("v_mov_b32", v(W_ + 5), 0)
    k.valu("v_mov_b32", v(W_ + 6), 0)
    k.valu("v_mov_b32", v(W_ + 7), 0)
    k.valu("v_mov_b32", v(W_ + 8), ZR)
    k.ds_write("ds_write_b128", v(W_ + 8), v(W_ + 4, 4), 0, tag="z")
    k.valu("v_and_b32", v(W_), 3, v(vS))
    k.valu("v_lshrrev_b32", v(W_ + 1), 2, v(vS))
    k.valu("v_mul_u32_u24", v(W_ + 1), 5, v(W_ + 1))
    for m in range(12):
        k.valu("v_add_u32", v(W_ + 2), 4 * m, v(W_))
        divmagic(k, v(HP + m), v(W_ + 2), 6, None, 47)
        k.valu("v_mul_u32_u24", v(W_ + 3), 6, v(HP + m))
        k.valu("v_sub_u32", v(W_ + 2), v(W_ + 2), v(W_ + 3))
        k.valu("v_cmp_eq_u32", "vcc", 5, v(W_ + 2))
        k.valu("v_add_u32", v(W_ + 2), v(W_ + 2), v(W_ + 1))
        k.valu("v_mul_u32_u24", v(W_ + 3), 21, v(HP + m))
        k.valu("v_cndmask_b32", v(W_ + 2), v(W_ + 2), 20, "vcc")
        k.valu("v_add_u32", v(W_ + 2), v(W_ + 2), v(W_ + 3))
        k.valu("v_mul_u32_u24", v(W_ + 2), 80, v(W_ + 2))
        k.valu("v_add_u32", v(U_ + m), s(sLds), v(W_ + 2))
        pump()
    k.valu("v_lshlrev_b32", v(W_), 3, v(vG))
    for j in range(5):
        for b in range(2):
            i = 2 * j + b
            k.valu("v_add_u32", v(W_ + 2), 32 * j + 4 * b, v(W_))
            divmagic(k, v(HD + i), v(W_ + 2), 20, None, 159)
            k.valu("v_mul_u32_u24", v(W_ + 3), 20, v(HD + i))
            k.valu("v_sub_u32", v(W_ + 2), v(W_ + 2), v(W_ + 3))
            k.valu("v_lshlrev_b32", v(V_ + i), 2, v(W_ + 2))
            if b:
                pump()
    todo = [(pi, b) for pi in range(20) for b in range(2)]
    for c in range(0, 40, 4):
        grp = todo[c:c + 4]
        for n, (pi, b) in enumerate(grp):
            m, j = pairs[pi]
            k.valu("v_cmp_eq_u32", s(sM + 2 * n, 2), v(HP + m), v(HD + 2 * j + b))
            k.valu("v_add_u32", v(AD + 2 * pi + b), v(U_ + m), v(V_ + 2 * j + b))
        for n, (pi, b) in enumerate(grp):
            k.valu("v_cndmask_b32", v(AD + 2 * pi + b), v(W_ + 8), v(AD + 2 * pi + b), s(sM + 2 * n, 2))
        pump()
    k.salu("s_mov_b32", s(sEps), f32(EPS6))
    k.stamp(2)
    k.wait_tag(vm="kv", lg="z")
    k.stamp(3)
    groups = [list(range(i, min(i + 3, 20))) for i in range(0, 20, 3)]

    def rd(gi):
        for n, pi in enumerate(groups[gi]):
            for b in range(2):
                k.ds_read("ds_read_b128", v(D1 + (gi & 1) * 24 + n * 8 + b * 4, 4), v(AD + 2 * pi + b), 0, tag=("kf", gi))
    rd(0)
    for gi in range(len(groups)):
        if gi + 1 < len(groups):
            rd(gi + 1)
        k.wait_tag(lg=("kf", gi))
        for n, pi in enumerate(groups[gi]):
            for q in range(4):
                src = D1 + (gi & 1) * 24 + n * 8 + q * 2
                k.valu("v_cvt_pk_bf16_f32", v(KVF + pi * 4 + q), v(src), v(src + 1))
            pump()

    def M(ap):
        D = D1 if ap % 2 == 0 else D2
        ops = []
        seen = set()
        for pi, (m, j) in enumerate(pairs):
            first = m not in seen
            seen.add(m)
            ops.append(lambda pi=pi, m=m, j=j, first=first: k.mfma("16x16x32", v(D + 4 * m, 4), v(KVF + pi * 4, 4),
                                                                   a(A_PQ + (ap * 5 + j) * 4, 4), 0 if first else v(D + 4 * m, 4)))
        return ops

    def N(ap):
        D = D1 if ap % 2 == 0 else D2
        ops = []
        for h in range(8):
            b = D + 6 * h
            ops.append(lambda b=b: k.valu("v_add_f32", v(b + 5), s(sEps), v(b + 5)))
        for h in range(8):
            b = D + 6 * h
            ops.append(lambda b=b: k.valu("v_rcp_f32", v(b + 5), v(b + 5)))
        done = 0
        for h in range(8):
            b = D + 6 * h
            for i in range(5):
                ops.append(lambda b=b, i=i: k.valu("v_mul_f32", v(b + i), v(b + i), v(b + 5)))
            while 2 * done + 1 <= 5 * h + 4:
                f0, f1 = 2 * done, 2 * done + 1
                r0, r1 = D + 6 * (f0 // 5) + f0 % 5, D + 6 * (f1 // 5) + f1 % 5
                ops.append(lambda d=done, r0=r0, r1=r1: k.valu("v_cvt_pk_bf16_f32", v(of(ap) + d), v(r0), v(r1)))
                done += 1
        assert done == 20
        return ops

    def interleave(mf, fl, per):
        fi = 0
        for ii, f in enumerate(mf):
            f()
            if ii % 2 == 1:
                pump()
            for _ in range(per):
                if fi < len(fl):
                    fl[fi]()
                    fi += 1
        while fi < len(fl):
            fl[fi]()
            fi += 1

    k.stamp(4)
    k.wait_tag(vm=("pq", 0))
    k.stamp(5)
    interleave(M(0), [], 0)
    for ap in range(1, 4):
        k.wait_tag(vm=("pq", ap))
        interleave(M(ap), N(ap - 1), 3)
    pump(100)
    k.salu("s_lshl_b32", s(sT0), s(sRb2), 6)
    k.salu("s_lshl_b32", s(sT1), s(sWave), 4)
    k.salu("s_add_u32", s(sT0), s(sT0), s(sT1))
    k.salu("s_mul_i32", s(sT0), s(sT0), 1280)
    k.salu("s_mul_i32", s(sT1), s(sCb), 160)
    k.salu("s_add_u32", s(sT0), s(sT0), s(sT1))
    k.valu("v_mul_u32_u24", v(vT), 1280, v(vS))
    k.valu("v_lshl_add_u32", v(vT + 1), v(vG), 3, v(vT))
    k.valu("v_lshl_add_u32", v(vT), v(vG), 4, v(vT))
    k.bload("buffer_load_dwordx4", v(XR, 4), v(vT), s(S_X, 4), s(sT0), tag="x")
    k.bload("buffer_load_dwordx4", v(XR + 4, 4), v(vT), s(S_X, 4), s(sT0), offset=64, tag="x")
    k.bload("buffer_load_dwordx2", v(XR + 8, 2), v(vT + 1), s(S_X, 4), s(sT0), offset=128, tag="x")

    def accr(ap, T):
        return v(OWN + 4 * T, 4) if ap == 0 else a(A_ACC + ((ap - 1) * 5 + T) * 4, 4)

    def G(ap):
        ops = []
        for j in range(5):
            for T in range(5):
                ops.append(lambda j=j, T=T: k.mfma("16x16x32", accr(ap, T), a(A_WO + (j * 5 + T) * 4, 4), v(of(ap) + 4 * j, 4),
                                                   0 if j == 0 else accr(ap, T)))
        return ops
    k.stamp(6)
    k.wait_tag(vm="wo")
    k.stamp(7)
    interleave(G(1) + G(2), N(3), 2)
    interleave(G(0) + G(3), [], 0)
    k.stamp(8)
    own = [OWN + 4 * T for T in range(5)]
    accs = {ap: [accr(ap, T) for T in range(5)] for ap in range(1, 4)}
    reduce_exchange(k, accs, own, vL16, sWave, vT, sT0, D2)
    k.stamp(9)
    OUTP, TMP = 112, 124
    vHA, vHB = 132, 133
    h_chunk_addr(k, vHA, vHB, vLane, vG, vS, sRb2, sCb, sWave, 134, sT0, sT1)
    k.wait_tag(vm="x")
    order = residual_pack(k, own, XR, OUTP, TMP)
    k.bstore("buffer_store_dwordx4", v(OUTP, 4), v(vHA), s(S_WS, 4), 0, flags="sc1", tag="h")
    k.bstore("buffer_store_dwordx4", v(OUTP + 4, 4), v(vHA), s(S_WS, 4), 0, offset=2048, flags="sc1", tag="h")
    k.bstore("buffer_store_dwordx2", v(OUTP + 8, 2), v(vHB), s(S_WS, 4), 0, flags="sc1", tag="h")
    vSm, vSq, vOne = 136, 137, 138
    k.valu("v_mov_b32", v(vSm), 0)
    k.valu("v_mov_b32", v(vSq), 0)
    k.valu("v_mov_b32", v(vOne), ONES_BF16)
    for i in range(10):
        k.valu("v_dot2c_f32_bf16", v(vSm), v(OUTP + i), v(vOne))
        k.valu("v_dot2c_f32_bf16", v(vSq), v(OUTP + i), v(OUTP + i))
    xsum_g(k, v(vSm), v(139))
    xsum_g(k, v(vSq), v(140))
    k.valu("v_cmp_eq_u32", "vcc", 1, v(vG))
    k.valu("v_cndmask_b32", v(vSm), v(vSm), v(vSq), "vcc")
    k.valu("v_lshlrev_b32", v(139), 3, v(vS))
    k.valu("v_lshl_add_u32", v(139), v(vG), 2, v(139))
    k.valu("v_mov_b32", v(140), OOB)
    k.valu("v_cmp_gt_u32", "vcc", 2, v(vG))
    k.valu("v_cndmask_b32", v(139), v(140), v(139), "vcc")
    k.salu("s_lshl_b32", s(sT0), s(sRb2), 9)
    k.salu("s_lshl_b32", s(sT1), s(sWave), 7)
    k.salu("s_add_u32", s(sT0), s(sT0), s(sT1))
    k.salu("s_add_u32", s(sT0), s(sT0), WS_ST)
    k.bstore("buffer_atomic_add_f32", v(vSm), v(139), s(S_WS, 4), s(sT0), tag="st")

    for i in range(10):
        k.valu("v_mov_b32", v(240 + i), v(OUTP + i))
    k.salu("s_lshr_b32", s(sT0), s(sRb2), 1)
    k.salu("s_lshl_b32", s(sT0), s(sT0), 7)
    k.salu("s_and_b32", s(sT1), s(sRb2), 1)
    k.salu("s_lshl_b32", s(sT1), s(sT1), 5)
    k.salu("s_add_u32", s(sT0), s(sT0), s(sT1))
    k.salu("s_lshl_b32", s(sT1), s(sCb), 2)
    k.salu("s_add_u32", s(sT0), s(sT0), s(sT1))
    k.salu("s_add_u32", s(sT0), s(sT0), WS_FL)
    k.stamp(10)
    publish(k, "h", S_WS, sWave, sT0, 136, 137, vLane)
    k.stamp_flush(1, "s46", "s47", WS_TS, "v254", v(vLane))
    return K2_LDS
```

```python
from common import *


def gen_k3(cfg, k):
    passes = cfg.get("k3_passes", [[0, 1, 2, 3], [4, 5], [6]])
    PRE = cfg.get("k3_pre", 3)
    DEPTH = cfg.get("k3_depth", 3)
    BUD = cfg.get("k3_budget", 4)
    LOOK = cfg.get("k3_look", 8)
    SLOTB = max(16384, max(len(p) for p in passes) * 4096)
    R = cfg.get("k3_ring", min(8, (163840 - 1024) // SLOTB))
    CSL = R * SLOTB
    RT = CSL + 1024
    LDS = RT
    assert LDS <= 163840
    S_WS, S_WD = 4, 8
    sWave, sRb, sFb, sT0, sT1, sT2, sTz, sWb, sW4, sW1, sH, sLw, sU, sCb64, sOb, sC640 = range(48, 64)
    sAct = 64
    sL1, sW2, sLo = 71, 72, 73
    vLane, vHf, vS32, vL16 = 1, 2, 3, 4
    vRd = 5
    vCsA = 8
    vSt = 9
    vNm, vK1, vK2 = 10, 12, 14
    vT = 16
    vG16, vS16 = 24, 25
    ACC = 32
    CSR = 144
    EW = 176
    NV = 208
    A_H, A_W = 0, 160
    NWB = 12

    k.diag = cfg.get("diag", False); k.diagv = "v31"
    if k.diag:
        k.valu("v_mov_b32", k.diagv, 0)
    k.stamp(0)
    k.sload(2, s(46, 2), "s[0:1]", 72)
    k.valu("v_and_b32", v(vLane), 63, "v0")
    k.valu("v_lshrrev_b32", v(vT), 6, "v0")
    k.valu("v_readfirstlane_b32", s(sWave), v(vT))
    k.valu("v_lshrrev_b32", v(vHf), 5, v(vLane))
    k.valu("v_and_b32", v(vS32), 31, v(vLane))
    k.valu("v_lshlrev_b32", v(vL16), 4, v(vLane))
    k.valu("v_lshrrev_b32", v(vG16), 4, v(vLane))
    k.valu("v_and_b32", v(vS16), 15, v(vLane))
    k.salu("s_and_b32", s(sT0), "s2", 7)
    k.salu("s_lshr_b32", s(sT1), "s2", 3)
    k.salu("s_lshr_b32", s(sRb), s(sT0), 1)
    k.salu("s_lshl_b32", s(sRb), s(sRb), 2)
    k.salu("s_lshr_b32", s(sT2), s(sT1), 3)
    k.salu("s_add_u32", s(sRb), s(sRb), s(sT2))
    k.salu("s_and_b32", s(sFb), s(sT0), 1)
    k.salu("s_lshl_b32", s(sFb), s(sFb), 3)
    k.salu("s_and_b32", s(sT2), s(sT1), 7)
    k.salu("s_add_u32", s(sFb), s(sFb), s(sT2))
    k.salu("s_mul_i32", s(sTz), s(sFb), 7)
    k.salu("s_min_u32", s(sTz), s(sTz), 101)
    k.salu("s_mul_i32", s(sWb), s(sTz), 40960)
    k.salu("s_add_u32", s(sWb), s(sWb), WS_WGUF)
    k.salu("s_mul_i32", s(sW4), s(sWave), 40960)
    k.salu("s_add_u32", s(sW4), s(sW4), s(sWb))
    k.salu("s_lshl_b32", s(sL1), s(sWave), 10)
    k.salu("s_add_u32", s(sW1), s(sWb), s(sL1))
    k.salu("s_lshl_b32", s(sLw), s(sWave), 12)
    k.salu("s_and_b32", s(sT0), s(sWave), 1)
    k.salu("s_mul_i32", s(sW2), s(sT0), 40960)
    k.salu("s_lshr_b32", s(sT0), s(sWave), 1)
    k.salu("s_lshl_b32", s(sT0), s(sT0), 12)
    k.salu("s_add_u32", s(sW2), s(sW2), s(sT0))
    k.salu("s_add_u32", s(sW2), s(sW2), s(sWb))
    k.salu("s_lshl_b32", s(sT0), s(sRb), 2)
    k.salu("s_add_u32", s(sT0), s(sT0), s(sWave))
    k.salu("s_mul_i32", s(sH), s(sT0), 40960)
    k.salu("s_add_u32", s(sH), s(sH), WS_H)
    k.wait(lg=0)
    srd(k, S_WS, "s46", "s47", WS_SIZE)

    stages = []
    seq = []
    for pi, P in enumerate(passes):
        nt = len(P)
        JS = 4 if nt >= 3 else (8 if nt == 2 else 16)
        for si in range((40 + JS - 1) // JS):
            st = len(stages)
            stages.append((pi, si, JS))
            for jj in range(JS):
                J = si * JS + jj
                if J >= 40:
                    break
                for ti, t in enumerate(P):
                    if JS == 4:
                        off = ti * 4096 + jj * 1024
                    elif JS == 8:
                        off = ((jj >> 2) * 2 + ti) * 4096 + (jj & 3) * 1024
                    else:
                        off = jj * 1024
                    seq.append((st, off, t, J))
    NST = len(stages)
    assert len(seq) == 280
    nloads = {}

    def issue_stage(st, split=None):
        pi, si, JS = stages[st]
        P = passes[pi]
        nt = len(P)
        ops = []
        slot = (st % R) * SLOTB

        def run4(lbase, lo, wbase, wo):
            for jl in range(4):
                def f(jl=jl):
                    if jl == 0:
                        k.salu("s_add_u32", "m0", s(lbase), lo)
                        k.salu("s_add_u32", s(sT2), s(wbase), wo)
                    k.dma(v(vL16), s(S_WS, 4), s(sT2), offset=jl * 1024, tag=("st", st))
                ops.append(f)

        def single(ti):
            def f():
                k.salu("s_add_u32", "m0", s(sL1), slot + ti * 4096)
                k.salu("s_add_u32", s(sLo), s(sW1), P[ti] * 40960 + si * 4096)
                k.dma(v(vL16), s(S_WS, 4), s(sLo), tag=("st", st))
            ops.append(f)
        if JS == 4:
            if nt >= 4:
                run4(sLw, slot, sW4, P[0] * 40960 + si * 4096)
                for ti in range(4, nt):
                    single(ti)
            else:
                for ti in range(nt):
                    single(ti)
        elif JS == 8:
            run4(sLw, slot, sW2, P[0] * 40960 + si * 8192)
        else:
            k_ = P[0] * 40960 + si * 16384
            for jl in range(4):
                def f(jl=jl):
                    if jl == 0:
                        k.salu("s_add_u32", "m0", s(sLw), slot)
                        k.salu("s_add_u32", s(sT2), s(sWb), k_)
                        k.salu("s_add_u32", s(sT2), s(sT2), s(sLw))
                    k.dma(v(vL16), s(S_WS, 4), s(sT2), offset=jl * 1024, tag=("st", st))
                ops.append(f)
        if pi == 0:
            hops = []
            for jl in range(JS):
                J = si * JS + jl
                if J >= 40:
                    break
                def f(J=J):
                    if J % 4 == 0:
                        k.salu("s_add_u32", s(sT1), s(sH), (J // 4) * 4096)
                    k.bload("buffer_load_dwordx4", a(A_H + J * 4, 4), v(vL16), s(S_WS, 4), s(sT1), offset=(J % 4) * 1024, flags="sc1", tag=("st", st))
                hops.append(f)
            if split is not None:
                split += hops
                nloads[st] = len(ops) + len(hops)
                return ops
            ops = hops + ops
        nloads[st] = len(ops)
        for f in ops:
            f.st = st
        return ops

    sS32 = sU
    k.salu("s_mov_b32", s(sS32), s(sT0))
    hq = []
    for st in range(PRE):
        for f in issue_stage(st, hq):
            f()
    k.salu("s_mov_b32", "m0", CSL)
    k.salu("s_lshl_b32", s(sT0), s(sTz), 7)
    k.salu("s_add_u32", s(sT0), s(sT0), WS_CS)
    k.dma(v(vL16), s(S_WS, 4), s(sT0), tag="cs0")
    k.stamp(1)
    for i in range(3):
        k.valu("v_add_u32", v(vRd + i), 65536 * i, v(vL16))
    k.valu("v_lshlrev_b32", v(vCsA), 4, v(vHf))
    k.valu("v_add_u32", v(vCsA), CSL, v(vCsA))
    k.salu("s_lshl_b32", s(sT0), s(sRb), 3)
    k.salu("s_lshl_b32", s(sT1), s(sWave), 1)
    k.salu("s_add_u32", s(sT0), s(sT0), s(sT1))
    k.salu("s_lshl_b32", s(sT0), s(sT0), 10)
    k.valu("v_bfe_u32", v(vSt), v(vLane), 4, 1)
    k.valu("v_lshlrev_b32", v(vSt), 10, v(vSt))
    k.valu("v_lshl_add_u32", v(vSt), v(vHf), 8, v(vSt))
    k.valu("v_lshl_add_u32", v(vSt), v(vS16), 4, v(vSt))
    k.valu("v_add_u32", v(vSt), s(sT0), v(vSt))
    for t in range(7):
        k.salu("s_add_u32", s(sT0), s(sTz), t)
        k.salu("s_lshr_b32", s(sT1), s(sT0), 1)
        k.salu("s_lshl_b32", s(sT1), s(sT1), 17)
        k.salu("s_and_b32", s(sT0), s(sT0), 1)
        k.salu("s_lshl_b32", s(sT0), s(sT0), 9)
        k.salu("s_add_u32", s(sT0), s(sT0), s(sT1))
        k.salu("s_add_u32", s(sAct + t), s(sT0), WS_ACT)
    k.salu("s_mov_b32", s(sC640), f32(1.0 / 640))
    k.salu("s_lshl_b32", s(sT0), s(sRb), 7)
    k.salu("s_add_u32", s(sT0), s(sT0), WS_FL)
    await_flags(k, "h", S_WS, sWave, sT0, sT1, vT, vT + 1, vLane)
    k.stamp(11)
    for f in hq[:4]:
        f()
    k.salu("s_lshl_b32", s(sT0), s(sS32), 8)
    k.salu("s_add_u32", s(sT0), s(sT0), WS_ST)
    k.valu("v_lshlrev_b32", v(vT), 3, v(vS32))
    k.bload("buffer_load_dwordx2", v(vT + 2, 2), v(vT), s(S_WS, 4), s(sT0), flags="sc1", tag="stat")
    for f in hq[4:]:
        f()
    late_stats = True
    def do_stats():
      k.wait_tag(vm="stat")
      ln_stats(k, v(vT + 2), v(vT + 3), v(vNm), v(vK1), v(vT), s(sC640))
      k.valu("v_mul_f32", v(vK2), v(vT), v(vT))
      k.valu("v_sub_f32", v(vNm), 0, v(vNm))
      k.valu("v_mul_f32", v(vK1), f32(-LOG2E), v(vK1))

    def wread(n):
        st, off, t, J = seq[n]
        addr = (st % R) * SLOTB + off
        k.ds_read("ds_read_b128", a(A_W + (n % NWB) * 4, 4), v(vRd + addr // 65536), addr % 65536, tag=("wf", n))

    def epi_ops(t, pk, first=True):
        A = ACC + 16 * t
        C = CSR + 16 * (t & 1)
        W = EW + 16 * (t & 1)
        ops = []
        for q in range(4):
            ops.append(lambda q=q: k.ds_read("ds_read_b128", v(C + 4 * q, 4), v(vCsA), t * 128 + q * 32, tag=("cs", t)))
        head = ops
        ops = []
        ops.append(lambda: k.wait_tag(lg=("cs", t)))
        if pk:
            for i in range(0, 8, 2):
                ops.append(lambda i=i: k.valu("v_pk_fma_f32", v(A + i, 2), v(vNm, 2), v(C + i, 2), v(A + i, 2), mods="op_sel_hi:[0,1,1]"))
            for i in range(0, 8, 2):
                ops.append(lambda i=i: k.valu("v_pk_mul_f32", v(W + i, 2), v(vK1, 2), v(A + i, 2), mods="op_sel_hi:[0,1]"))
            for i in range(8):
                ops.append(lambda i=i: k.valu("v_exp_f32", v(W + i), v(W + i)))
                if i % 2:
                    ops.append(lambda i=i: k.valu("v_pk_fma_f32", v(A + 7 + i, 2), v(vNm, 2), v(C + 7 + i, 2), v(A + 7 + i, 2), mods="op_sel_hi:[0,1,1]"))
            for i in range(0, 8, 2):
                ops.append(lambda i=i: k.valu("v_pk_fma_f32", v(W + i, 2), v(W + i, 2), v(vK2, 2), v(vK2, 2), mods="op_sel_hi:[1,0,0]"))
            for i in range(8):
                ops.append(lambda i=i: k.valu("v_rcp_f32", v(W + i), v(W + i)))
                if i % 2:
                    ops.append(lambda i=i: k.valu("v_pk_mul_f32", v(A + i - 1, 2), v(A + i - 1, 2), v(A + 7 + i, 2)))
            for i in range(0, 8, 2):
                ops.append(lambda i=i: k.valu("v_pk_mul_f32", v(A + i, 2), v(A + i, 2), v(W + i, 2)))
        else:
            for i in range(8):
                ops.append(lambda i=i: k.valu("v_fma_f32", v(A + i), v(vNm), v(C + i), v(A + i)))
            for i in range(8):
                ops.append(lambda i=i: k.valu("v_mul_f32", v(W + i), v(vK1), v(A + i)))
            for i in range(8):
                ops.append(lambda i=i: k.valu("v_exp_f32", v(W + i), v(W + i)))
                ops.append(lambda i=i: k.valu("v_fma_f32", v(A + 8 + i), v(vNm), v(C + 8 + i), v(A + 8 + i)))
            for i in range(8):
                ops.append(lambda i=i: k.valu("v_fma_f32", v(W + i), v(W + i), v(vK2), v(vK2)))
            for i in range(8):
                ops.append(lambda i=i: k.valu("v_rcp_f32", v(W + i), v(W + i)))
                ops.append(lambda i=i: k.valu("v_mul_f32", v(A + i), v(A + i), v(A + 8 + i)))
            for i in range(8):
                ops.append(lambda i=i: k.valu("v_mul_f32", v(A + i), v(A + i), v(W + i)))
        for i in range(4):
            ops.append(lambda i=i: k.valu("v_cvt_pk_bf16_f32", v(W + 8 + i), v(A + 2 * i), v(A + 2 * i + 1)))
        ops.append(lambda: k.bstore("buffer_store_dwordx4", v(W + 8, 4), v(vSt), s(S_WS, 4), s(sAct + t), flags="sc1", tag="act"))
        return head, ops

    k.wait_tag(vm=("st", 0))
    k.barrier()
    k.stamp(2)
    barred = 0
    nread = 0
    next_stage = PRE
    fill = []
    loads = []
    rt_issued = False
    pass_end = {}
    c = 0
    for pi, P in enumerate(passes):
        c += 40 * len(P)
        pass_end[c - 1] = pi
    hold = 0
    done_tiles = []
    for n in range(280):
        st, off, t, J = seq[n]
        while nread < min(280, n + LOOK + 1):
            ns = seq[nread][0]
            if ns > barred:
                assert ns < next_stage and not any(getattr(f, "st", None) == ns for f in loads)
                k.wait_tag(vm=("st", ns), lg=(lambda tg, ns=ns: isinstance(tg, tuple) and tg[0] == "wf" and seq[tg[1]][0] <= ns - 2))
                k.barrier()
                barred = ns
                while next_stage < NST and next_stage <= ns - 2 + R and next_stage <= ns + DEPTH + (2 if stages[ns][0] > 0 else 0):
                    loads += issue_stage(next_stage)
                    next_stage += 1
            wread(nread)
            nread += 1
        if n in (40, 80, 120, 160, 200, 240):
            k.stamp(2 + n // 40)
        if n % 2 == 0:
            k.wait_tag(lg=("wf", n + 1))
        d = v(ACC + 16 * t, 16)
        k.mfma("32x32x16", d, a(A_W + (n % NWB) * 4, 4), a(A_H + 4 * J, 4), 0 if J == 0 else d)
        if n == 64:
            do_stats()
        if n in pass_end and n != 279:
            for tt in passes[pass_end[n]]:
                fill.append(tt)
            hold = 2
        budget = BUD
        if loads:
            loads.pop(0)()
            budget -= 2
        if hold:
            hold -= 1
        else:
            while budget > 0 and fill:
                if isinstance(fill[0], int):
                    tt = fill.pop(0)
                    hd, bd = epi_ops(tt, False)
                    fill = hd + bd + fill
                fill.pop(0)()
                budget -= 1
    k.stamp(9)
    while loads:
        loads.pop(0)()
    while fill and not isinstance(fill[0], int):
        fill.pop(0)()
    rest = list(fill) + list(passes[-1])
    eps = [epi_ops(tt, True) for tt in rest]
    for f in eps[0][0]:
        f()
    k.stamp(10)
    for i, (hd, bd) in enumerate(eps):
        bd[0]()
        if i + 1 < len(eps):
            for f in eps[i + 1][0]:
                f()
        for f in bd[1:]:
            f()
    k.salu("s_lshl_b32", s(sT0), s(sRb), 7)
    k.salu("s_lshl_b32", s(sT1), s(sFb), 2)
    k.salu("s_add_u32", s(sT0), s(sT0), s(sT1))
    k.salu("s_add_u32", s(sT0), s(sT0), WS_FL + 2048)
    k.stamp(12)
    publish(k, "a", S_WS, sWave, sT0, vT, vT + 1, vLane)
    k.stamp_flush(2, "s46", "s47", WS_TS, "v30", v(vLane))
    return LDS
```

```python
from common import *
from f2 import wg_map_2, h_chunk_addr, reduce_exchange, residual_pack, EX

K4_LDS = EX + 4 * 15360


def gen_k4(cfg, k):
    DB = cfg.get("k4_depth", 7)
    S_WS, S_ACT, S_WD, S_OUT = 4, 8, 12, 16
    sWave, sRb2, sCb, sT0, sT1, sA, sW = range(48, 55)
    vLane, vG, vS, vL16 = 1, 2, 3, 4
    vAq = 5
    vW4 = 9
    vT = 10
    ACC = 16
    HR = 240
    OUTP, TMP = 112, 124
    vHA, vHB = 132, 133
    STG = 144
    NV = 204

    k.diag = cfg.get("diag", False); k.diagv = "v140"
    if k.diag:
        k.valu("v_mov_b32", k.diagv, 0)
    k.stamp(0)
    k.sload(2, s(40, 2), "s[0:1]", 56)
    k.sload(2, s(46, 2), "s[0:1]", 72)
    k.valu("v_and_b32", v(vLane), 63, "v0")
    k.valu("v_lshrrev_b32", v(vT), 6, "v0")
    k.valu("v_readfirstlane_b32", s(sWave), v(vT))
    k.valu("v_lshrrev_b32", v(vG), 4, v(vLane))
    k.valu("v_and_b32", v(vS), 15, v(vLane))
    k.valu("v_lshlrev_b32", v(vL16), 4, v(vLane))
    wg_map_2(k, sRb2, sCb, sT0, sT1)
    for ap in range(4):
        k.salu("s_add_u32", s(sT0), s(sWave), ap)
        k.salu("s_and_b32", s(sT0), s(sT0), 3)
        k.salu("s_lshl_b32", s(sT0), s(sT0), 10)
        k.valu("v_add_u32", v(vAq + ap), s(sT0), v(vL16))
    k.valu("v_add_u32", v(vW4), 4096, v(vL16))
    k.salu("s_lshl_b32", s(sA), s(sWave), 17)
    k.salu("s_lshl_b32", s(sT0), s(sRb2), 12)
    k.salu("s_add_u32", s(sA), s(sA), s(sT0))
    k.salu("s_mul_i32", s(sW), s(sWave), 40960)
    k.salu("s_mul_i32", s(sT0), s(sCb), 5120)
    k.salu("s_add_u32", s(sW), s(sW), s(sT0))
    k.wait(lg=0)
    srd(k, S_WS, "s46", "s47", WS_SIZE)
    srd_off(k, S_ACT, "s46", "s47", WS_ACT, ACT_BYTES)
    srd_off(k, S_WD, "s46", "s47", WS_WDF, WDF_BYTES)
    srd(k, S_OUT, "s40", "s41", 2621440)

    def issue(i):
        b = (i % DB) * 36
        ops = []
        for T in range(5):
            def f(T=T):
                if T < 4:
                    k.bload("buffer_load_dwordx4", a(b + 16 + 4 * T, 4), v(vL16), s(S_WD, 4), s(sW), offset=T * 1024, tag=("st", i))
                else:
                    k.bload("buffer_load_dwordx4", a(b + 16 + 4 * T, 4), v(vW4), s(S_WD, 4), s(sW), tag=("st", i))
                    k.salu("s_add_u32", s(sW), s(sW), 4 * 40960)
            ops.append(f)
        for ap in range(4):
            def f(ap=ap):
                k.bload("buffer_load_dwordx4", a(b + 4 * ap, 4), v(vAq + ap), s(S_ACT, 4), s(sA), flags="sc1", tag=("st", i))
                if ap == 3:
                    k.salu("s_add_u32", s(sA), s(sA), 4 * 131072)
            ops.append(f)
        return ops

    aq = []
    for i in range(DB):
        ops = issue(i)
        for f in ops[:5]:
            f()
        aq += ops[5:]
    k.stamp(1)
    k.salu("s_lshr_b32", s(sT0), s(sRb2), 1)
    k.salu("s_lshl_b32", s(sT0), s(sT0), 7)
    k.salu("s_add_u32", s(sT0), s(sT0), WS_FL + 2048)
    await_flags(k, "a", S_WS, sWave, sT0, sT1, vT, vT + 1, vLane)
    k.stamp(11)
    for f in aq:
        f()
    pend = []
    for i in range(14):
        b = (i % DB) * 36
        while pend:
            pend.pop(0)()
        k.wait_tag(vm=("st", i))
        if i in (0, 2, 4, 6, 8, 10, 12):
            k.stamp(2 + i // 2)
        for ap in range(4):
            for T in range(5):
                d = v(ACC + (ap * 5 + T) * 4, 4)
                k.mfma("16x16x32", d, a(b + 16 + 4 * T, 4), a(b + 4 * ap, 4), 0 if i == 0 else d)
        if i + DB < 14:
            pend = issue(i + DB)
    k.stamp(9)
    own = [ACC + 4 * T for T in range(5)]
    accs = {ap: [v(ACC + (ap * 5 + T) * 4, 4) for T in range(5)] for ap in range(1, 4)}
    reduce_exchange(k, accs, own, vL16, sWave, vT, sT0, STG)
    k.salu("s_lshl_b32", s(sT0), s(sRb2), 6)
    k.salu("s_lshl_b32", s(sT1), s(sWave), 4)
    k.salu("s_add_u32", s(sT0), s(sT0), s(sT1))
    k.salu("s_mul_i32", s(sT0), s(sT0), 1280)
    k.salu("s_mul_i32", s(sT1), s(sCb), 160)
    k.salu("s_add_u32", s(sT0), s(sT0), s(sT1))
    k.valu("v_mul_u32_u24", v(vT), 1280, v(vS))
    k.valu("v_lshl_add_u32", v(vT + 1), v(vG), 3, v(vT))
    k.valu("v_lshl_add_u32", v(vT), v(vG), 4, v(vT))
    k.stamp(10)
    residual_pack(k, own, HR, OUTP, TMP)
    k.bstore("buffer_store_dwordx4", v(OUTP, 4), v(vT), s(S_OUT, 4), s(sT0), tag="o")
    k.bstore("buffer_store_dwordx4", v(OUTP + 4, 4), v(vT), s(S_OUT, 4), s(sT0), offset=64, tag="o")
    k.bstore("buffer_store_dwordx2", v(OUTP + 8, 2), v(vT + 1), s(S_OUT, 4), s(sT0), offset=128, tag="o")
    k.stamp_flush(3, "s46", "s47", WS_TS, "v141", v(vLane))
    return K4_LDS
```

```python
import sys, json
from common import *
import importlib

HDR = open("sequential_preLN__linear_attn_block__swiglu_ffn__prompt.s.ref").read().split("; Override launch")[0]

def build(cfg):
    mods = cfg.get("mods", {})
    if cfg.get("fused"):
        import f1, f2, f3, f4
        kk = K("k234_kernel")
        header(kk, 256)
        l2 = f2.gen_k2(cfg, kk); kk.vm, kk.lg = [], []
        l3 = f3.gen_k3(cfg, kk); kk.vm, kk.lg = [], []
        l4 = f4.gen_k4(cfg, kk)
        kk.label("L_end_k234_kernel")
        kk.raw("s_endpgm", 4, "other")
        ks = [f1.gen_k1(cfg), (kk, 256, 252, max(l2, l3, l4), 256)]
    else:
      ks = None
    ks = ks or [getattr(importlib.import_module(mods.get(n, n)), "gen_" + n)(cfg) for n in ("k1", "k2", "k3", "k4")]
    ks = [x if len(x) == 5 else x + (256,) for x in ks]
    out = HDR
    for k, nv, na, lds, blk in ks:
        out += "; @launch kernel=%s grid=(256,1,1) block=(%d,1,1) lds=%d\n" % (k.name, blk, lds)
    out += '.amdgcn_target "amdgcn-amd-amdhsa--gfx950"\n.text\n'
    for k, nv, na, lds, blk in ks:
        k.hazards()
        if cfg.get("align", 1):
            k.align8()
        out += ".globl %s\n.p2align 8\n.type %s,@function\n%s:\n" % (k.name, k.name, k.name)
        out += k.text()
        sys.stderr.write("%s: %d bytes, %d instrs\n" % (k.name, k.size(), sum(1 for i in k.ins if i.size)))
    out += ".p2align 8\nL_code_end:\n    s_endpgm\n"
    out += '.section .rodata,"a"\n'
    for k, nv, na, lds, blk in ks:
        out += descriptor(k.name, nv, na)
    return out

if __name__ == "__main__":
    cfg = json.loads(sys.argv[2]) if len(sys.argv) > 2 else {}
    open(sys.argv[1], "w").write(build(cfg))
```
